```python
import torch

def _softmax(x, axis=-1):
    return torch.softmax(x, dim=axis)
def _gelu(x):
    return torch.nn.functional.gelu(x, approximate="tanh")
def _silu(x):
    return torch.nn.functional.silu(x)
def _sigmoid(x):
    return torch.sigmoid(x)
def _layernorm(x, axis=-1, eps=1e-5):
    m = x.mean(dim=axis, keepdim=True)
    v = x.var(dim=axis, keepdim=True, unbiased=False)
    return (x - m) / torch.sqrt(v + eps)
def _scatter_add(tgt, idx, src, axis=0):
    return tgt.clone().index_add_(axis, idx, src)
def _segment_sum(src, seg, n):
    out = torch.zeros((n,) + src.shape[1:], dtype=src.dtype)
    return out.index_add_(0, seg, src)
def _pad(x, pw):
    flat = tuple(v for pair in reversed(pw) for v in pair)
    return torch.nn.functional.pad(x, flat)

kernel_name = 'recurrent_scan__sliding_block__glu_gated_swiglu__prompt'

def setup_inputs():

    _w = (lambda a: (lambda t: t.to(torch.bfloat16) if t.is_floating_point() else t)(torch.as_tensor(a)))
    def _A_setup():
        B, S, D = 1, 2048, 512
        return {
            "x": _w((lambda *s: torch.randn(*s, dtype=torch.bfloat16) * 0.05)(B, S, D)),
            "wqkv": _w((lambda *s: torch.randn(*s, dtype=torch.bfloat16) * 0.2)(D, 3 * D)),
            "wo": _w((lambda *s: torch.randn(*s, dtype=torch.bfloat16) * 0.2)(D, D)),
        }
    _A_in = _A_setup()

    def _B_setup():
        B, S, D, F = 1, 2048, 512, 1376
        return {
            "x": _w((lambda *s: torch.randn(*s, dtype=torch.bfloat16) * 0.05)(B, S, D)),
            "w1": _w((lambda *s: torch.randn(*s, dtype=torch.bfloat16) * 0.1)(D, F) * (2.0 / D) ** 0.5),
            "w3": _w((lambda *s: torch.randn(*s, dtype=torch.bfloat16) * 0.1)(D, F) * (2.0 / D) ** 0.5),
            "w2": _w((lambda *s: torch.randn(*s, dtype=torch.bfloat16) * 0.1)(F, D) * (2.0 / F) ** 0.5),
        }
    _B_in = _B_setup()

    return {
        "A_x": _A_in["x"],
        "A_wqkv": _A_in["wqkv"],
        "A_wo": _A_in["wo"],
        "B_x": _B_in["x"],
        "B_w1": _B_in["w1"],
        "B_w3": _B_in["w3"],
        "B_w2": _B_in["w2"],
    }

def reference(A_x, A_wqkv, A_wo, B_x, B_w1, B_w3, B_w2):
    def _A_ref(x, wqkv, wo):
        B, S, D = x.shape
        H = 32; Dh = D // H; W = 256
        qkv = (lambda x, *d: x.permute(*d))((x @ wqkv).reshape(B, S, 3, H, Dh), 2, 0, 3, 1, 4)
        q, k, v = qkv[0], qkv[1], qkv[2]
        scores = torch.einsum("bhqd,bhkd->bhqk", q, k) * (Dh ** -0.5)
        idx = torch.arange(S)
        mask = (idx[:, None] - idx[None, :] >= 0) & (idx[:, None] - idx[None, :] < W)
        scores = torch.where(mask[None, None], scores, -1e9)
        p = _softmax(scores, axis=-1)
        o = torch.einsum("bhqk,bhkd->bhqd", p, v)
        return (lambda x, *d: x.permute(*d))(o, 0, 2, 1, 3).reshape(B, S, D) @ wo

    def _B_ref(x, w1, w3, w2):
        gate = torch.einsum("bsd,df->bsf", x, w1)
        up = torch.einsum("bsd,df->bsf", x, w3)
        h = _silu(gate) * up
        out = torch.einsum("bsf,fd->bsd", h, w2)
        return out

    x = A_x
    xn = _layernorm(x, axis=-1)
    s = _A_ref(xn, A_wqkv, A_wo)
    g = _silu(_B_ref(xn, B_w1, B_w3, B_w2))
    return x + s * g
```

```python
import re

REG_RE = re.compile(r"^(-|abs\(|\|)?([vas])(?:(\d+)|\[(\d+):(\d+)\])\)?\|?$")


def parse_reg(tok):
    tok = tok.strip()
    if tok in ("vcc", "exec", "m0"):
        return (tok, 0, 0)
    if tok in ("vcc_lo", "vcc_hi"):
        return ("vcc", 0, 0)
    m = REG_RE.match(tok)
    if m:
        f = m.group(2)
        if m.group(3) is not None:
            n = int(m.group(3))
            return (f, n, n)
        return (f, int(m.group(4)), int(m.group(5)))
    return None


def split_ops(s):
    out, depth, cur = [], 0, ""
    for ch in s:
        if ch in "[(":
            depth += 1
        elif ch in "])":
            depth -= 1
        if ch == "," and depth == 0:
            out.append(cur.strip())
            cur = ""
        else:
            cur += ch
    if cur.strip():
        out.append(cur.strip())
    return out


TRANS = ("v_exp_f32", "v_log_f32", "v_rcp_f32", "v_rsq_f32", "v_sqrt_f32", "v_sin_f32", "v_cos_f32", "v_rcp_iflag_f32")


class Inst:
    __slots__ = ("text", "mn", "reads", "writes", "kind", "passes", "srcC", "cond", "dpp", "lds_dma", "ws")

    def __init__(self, text):
        self.text = text
        body = text.split(";")[0].strip()
        parts = body.split(None, 1)
        self.mn = parts[0]
        rest = parts[1] if len(parts) > 1 else ""
        ops = split_ops(rest)
        mods = ""
        if ops:
            last = ops[-1].split(None, 1)
            if len(last) > 1:
                ops[-1] = last[0]
                mods = last[1]
        regs = [parse_reg(o) for o in ops]
        mn = self.mn
        self.reads, self.writes = [], []
        self.passes = 0
        self.srcC = None
        self.cond = False
        self.dpp = ("row_" in mods) or ("quad_perm" in mods) or ("_dpp" in mn)
        self.lds_dma = False
        self.ws = 1
        R = lambda i: [regs[i]] if i < len(regs) and regs[i] else []
        Rest = lambda i: [r for r in regs[i:] if r]
        if mn.startswith("v_mfma"):
            self.kind = "mfma"
            self.passes = 8 if "32x32x16" in mn else 4
            self.writes = R(0)
            self.reads = Rest(1)
            self.srcC = regs[3]
        elif mn.startswith("v_permlane") :
            self.kind = "valu"
            self.writes = R(0) + R(1)
            self.reads = R(0) + R(1)
        elif mn.startswith("v_cmp"):
            self.kind = "valu"
            self.writes = R(0)
            self.reads = Rest(1)
        elif mn in ("v_readfirstlane_b32", "v_readlane_b32"):
            self.kind = "valu"
            self.writes = R(0)
            self.reads = Rest(1)
        elif mn.startswith(("v_add_co_u32", "v_sub_co_u32", "v_subrev_co_u32")):
            self.kind = "valu"
            self.writes = R(0) + R(1)
            self.reads = Rest(2)
        elif mn.startswith(("v_addc_co_u32", "v_subb_co_u32")):
            self.kind = "valu"
            self.writes = R(0) + R(1)
            self.reads = Rest(2)
        elif mn.startswith("v_"):
            self.kind = "trans" if mn.replace("_e64", "").replace("_e32", "") in TRANS else "valu"
            self.writes = R(0)
            self.reads = Rest(1)
            if mn.startswith(("v_fmac", "v_pk_fmac", "v_dot2c")):
                self.reads += R(0)
            if mn.startswith("v_cndmask") and len(regs) == 3:
                self.reads.append(("vcc", 0, 0))
        elif mn.startswith(("buffer_load", "global_load")):
            self.kind = "vmem"
            if " lds" in (" " + mods) or "_lds_" in mn:
                self.lds_dma = True
                self.reads = Rest(0) + [("m0", 0, 0)]
            else:
                self.writes = R(0)
                self.reads = Rest(1)
        elif mn.startswith(("buffer_store", "global_store")):
            self.kind = "vmem"
            self.reads = Rest(0)
        elif mn.startswith("ds_read") or mn.startswith("ds_bpermute") or mn.startswith("ds_swizzle"):
            self.kind = "ds"
            self.writes = R(0)
            self.reads = Rest(1)
        elif mn.startswith("ds_write"):
            self.kind = "ds"
            self.reads = Rest(0)
        elif mn.startswith("s_nop"):
            self.kind = "nop"
            self.ws = int(ops[0], 0) + 1
        elif mn.startswith(("s_cmp", "s_waitcnt", "s_barrier", "s_endpgm", "s_setprio", "s_sleep", "s_cbranch", "s_branch")):
            self.kind = "salu"
            self.reads = [r for r in regs if r]
        elif mn.startswith("s_"):
            self.kind = "salu"
            self.writes = R(0)
            self.reads = Rest(1)
        else:
            raise ValueError("unknown instruction: " + text)


def overlap(a, b):
    return a[0] == b[0] and a[1] <= b[2] and b[1] <= a[2]


class Asm:
    def __init__(self):
        self.out = []
        self.hist = []
        self.cum = 0
        self.cond_depth = 0
        self.n_nops = 0
        self.max_v = -1
        self.max_a = -1
        self.max_s = -1
        self.count = 0

    def raw(self, s):
        self.out.append(s)

    def comment(self, s):
        self.out.append("    ; " + s)

    def label(self, name, flush=True):
        if flush:
            self.flush_hazards()
        self.out.append(name + ":")

    def skip_begin(self, branch_text):
        self.inst(branch_text, noflush=True)
        self.begin_cond()

    def skip_end(self, name):
        self.end_cond()
        self.out.append(name + ":")

    def flush_hazards(self):
        need = 0
        for (p, pos) in self.hist[-40:]:
            el = self.cum - pos - 1
            mx = 0
            if p.kind == "mfma":
                mx = 12 if p.passes == 8 else 8
            elif p.kind in ("valu", "trans"):
                mx = 5 if any(w[0] in ("s", "vcc") for w in p.writes) else 2
            elif p.kind == "salu" and any(w[0] == "m0" for w in p.writes):
                mx = 1
            elif p.kind == "vmem" and not p.writes and not p.lds_dma:
                mx = 2
            need = max(need, mx - el)
        self._nop(need)

    def _nop(self, n):
        while n > 0:
            k = min(n, 16)
            self.out.append(f"    s_nop {k-1}")
            self.cum += k
            self.n_nops += 1
            n -= k

    def begin_cond(self):
        self.cond_depth += 1

    def end_cond(self):
        self.cond_depth -= 1

    def _required(self, c):
        need = 0
        for (p, pos) in self.hist[-48:]:
            el = self.cum - pos - 1
            if el >= 20:
                continue
            req = 0
            if p.kind == "mfma":
                D = p.writes[0]
                if c.kind == "mfma":
                    for r in c.reads:
                        if overlap(r, D):
                            if r is c.srcC or r == c.srcC:
                                if r == D and c.passes == p.passes:
                                    req = max(req, 0)
                                else:
                                    req = max(req, 10 if p.passes == 8 else 6)
                            else:
                                req = max(req, 12 if p.passes == 8 else 8)
                    for w in c.writes:
                        if overlap(w, D) and not (w == D and c.srcC == D):
                            req = max(req, 12 if p.passes == 8 else 8)
                else:
                    for r in c.reads + c.writes:
                        if overlap(r, D):
                            req = max(req, 12 if p.passes == 8 else 8)
                    if c.kind in ("valu", "trans") and p.srcC:
                        for w in c.writes:
                            if overlap(w, p.srcC):
                                req = max(req, 7 if p.passes == 8 else 3)
            elif p.kind in ("valu", "trans"):
                if p.mn.startswith("v_dot"):
                    for w in p.writes:
                        for r in c.reads + c.writes:
                            if overlap(r, w):
                                if c.mn == p.mn and c.reads and overlap(c.reads[-1], w) and not any(overlap(x, w) for x in c.reads[:-1]):
                                    pass
                                else:
                                    req = max(req, 3)
                for w in p.writes:
                    if w[0] in ("v", "a"):
                        for r in c.reads:
                            if overlap(r, w):
                                if c.kind == "mfma":
                                    req = max(req, 2)
                                elif c.mn.startswith("v_permlane"):
                                    req = max(req, 2)
                                elif c.mn in ("v_readfirstlane_b32", "v_readlane_b32"):
                                    req = max(req, 1)
                                elif c.dpp:
                                    req = max(req, 2)
                                elif p.kind == "trans" and c.kind in ("valu",):
                                    req = max(req, 1)
                                elif p.kind == "trans" and c.kind in ("vmem", "ds"):
                                    req = max(req, 1)
                    elif w[0] in ("s", "vcc"):
                        for r in c.reads:
                            if overlap(r, w):
                                if c.kind == "vmem":
                                    req = max(req, 5)
                                elif c.kind in ("valu", "trans"):
                                    req = max(req, 4 if c.mn == "v_readlane_b32" else 2)
            elif p.kind == "salu":
                if any(w[0] == "m0" for w in p.writes) and c.lds_dma:
                    req = max(req, 1)
            elif p.kind == "vmem" and not p.lds_dma and not p.writes:
                if c.kind in ("valu", "trans"):
                    for w in c.writes:
                        for r in p.reads:
                            if overlap(r, w):
                                req = max(req, 2)
            need = max(need, req - el)
        return need

    def __call__(self, text):
        for line in text.strip().split("\n"):
            line = line.strip()
            if not line or line.startswith(";"):
                continue
            self.inst(line)

    def inst(self, text, noflush=False):
        c = Inst(text)
        for r in c.reads + c.writes:
            if r[0] == "v":
                self.max_v = max(self.max_v, r[2])
            elif r[0] == "a":
                self.max_a = max(self.max_a, r[2])
            elif r[0] == "s":
                self.max_s = max(self.max_s, r[2])
        if c.mn.startswith(("s_cbranch", "s_branch")) and not noflush:
            self.flush_hazards()
        need = self._required(c)
        self._nop(need)
        self.out.append("    " + text)
        self.hist.append((c, self.cum))
        if len(self.hist) > 64:
            self.hist = self.hist[-64:]
        if self.cond_depth == 0:
            self.cum += c.ws
        self.count += 1

    def text(self):
        return "\n".join(self.out) + "\n"
```

```python
import sys
sys.path.insert(0, "work")
from dsl import Asm

NAME = "recurrent_scan__sliding_block__glu_gated_swiglu__prompt"
S, D, F, H, DH = 2048, 512, 1376, 32, 16

KA_X, KA_WQKV, KA_WO, KA_BX, KA_W1, KA_W3, KA_W2, KA_OUT, KA_DBG, KA_WS = [8 * i for i in range(10)]

WS_XB = 0
WS_QB = 2 << 20
WS_KB = 4 << 20
WS_VB = 6 << 20
WS_HB = 8 << 20
WS_OB = 14 << 20
BLK_BYTES = S * 32


def srd(a, dst, base_lo, nbytes, off=0):
    if off:
        a(f"s_add_u32 s{dst}, s{base_lo}, {off}")
        a(f"s_addc_u32 s{dst+1}, s{base_lo+1}, 0")
    else:
        a(f"s_mov_b32 s{dst}, s{base_lo}")
        a(f"s_mov_b32 s{dst+1}, s{base_lo+1}")
    a(f"s_mov_b32 s{dst+2}, {nbytes}")
    a(f"s_mov_b32 s{dst+3}, 0x00020000")


def round_bf16(a, dst, src, tmp):
    a(f"v_cvt_pk_bf16_f32 v{tmp}, v{src}, v{src}")
    a(f"v_lshlrev_b32 v{dst}, 16, v{tmp}")


def gen_k0():
    a = Asm()
    a("s_cmp_ge_u32 s2, 256")
    a("s_cbranch_scc1 L_k0_end")
    a(f"s_load_dwordx2 s[4:5], s[0:1], {KA_X}")
    a(f"s_load_dwordx2 s[6:7], s[0:1], {KA_WS}")
    a("""
    v_and_b32 v1, 31, v0            ; c = lane & 31
    v_lshrrev_b32 v2, 5, v0
    v_lshl_add_u32 v2, s2, 3, v2
    v_lshlrev_b32 v3, 10, v2        ; row*1024
    v_lshl_add_u32 v3, v1, 4, v3    ; + c*16
    s_waitcnt lgkmcnt(0)
    """)
    srd(a, 8, 4, S * D * 2)
    srd(a, 12, 6, S * D * 2, WS_XB)
    a("""
    buffer_load_dwordx4 v[8:11], v3, s[8:11], 0 offen
    buffer_load_dwordx4 v[12:15], v3, s[8:11], 0 offen offset:512
    v_mov_b32 v4, 0x3f803f80
    v_mov_b32 v5, 0
    s_waitcnt vmcnt(0)
    """)
    for i in range(8):
        a(f"v_dot2_f32_bf16 v5, v{8+i}, v4, v5")

    def allreduce32(v, t):
        for sh in (8, 4, 2, 1):
            a(f"v_add_f32_dpp v{v}, v{v}, v{v} row_ror:{sh} row_mask:0xf bank_mask:0xf")
        a(f"v_mov_b32 v{t}, v{v}")
        a(f"v_permlane16_swap_b32 v{v}, v{t}")
        a(f"v_add_f32 v{v}, v{v}, v{t}")

    allreduce32(5, 6)
    a("v_mul_f32 v5, 0x3b000000, v5")
    a("v_mov_b32 v6, 0")
    for i in range(8):
        a(f"v_lshlrev_b32 v{16+2*i}, 16, v{8+i}")
        a(f"v_and_b32 v{17+2*i}, 0xffff0000, v{8+i}")
        a(f"v_sub_f32 v32, v{16+2*i}, v5")
        a(f"v_sub_f32 v33, v{17+2*i}, v5")
        a("v_fmac_f32 v6, v32, v32")
        a("v_fmac_f32 v6, v33, v33")
    allreduce32(6, 7)
    a("v_mul_f32 v6, 0x3b000000, v6   ; var")
    a("""
    v_cvt_pk_bf16_f32 v7, v5, v6
    v_lshlrev_b32 v5, 16, v7
    v_and_b32 v6, 0xffff0000, v7
    v_add_f32 v6, 0x3727c5ac, v6         ; + 1e-5
    """)
    round_bf16(a, 6, 6, 7)
    a("v_sqrt_f32 v6, v6")
    round_bf16(a, 6, 6, 7)
    a("v_rcp_f32 v7, v6")
    for i in range(8):
        a(f"v_sub_f32 v32, v{16+2*i}, v5")
        a(f"v_sub_f32 v33, v{17+2*i}, v5")
        a("v_cvt_pk_bf16_f32 v34, v32, v33")
        a("v_lshlrev_b32 v32, 16, v34")
        a("v_and_b32 v33, 0xffff0000, v34")
        a("v_mul_f32 v34, v32, v7")
        a("v_mul_f32 v35, v33, v7")
        a("v_fma_f32 v36, -v34, v6, v32")
        a("v_fma_f32 v37, -v35, v6, v33")
        a("v_fma_f32 v34, v36, v7, v34")
        a("v_fma_f32 v35, v37, v7, v35")
        a(f"v_cvt_pk_bf16_f32 v{8+i}, v34, v35")
    a("""
    v_lshrrev_b32 v16, 1, v1             ; c>>1
    v_lshlrev_b32 v16, 16, v16           ; *65536
    v_and_b32 v17, 1, v1
    v_lshl_add_u32 v16, v17, 4, v16      ; + half*16
    v_lshl_add_u32 v16, v2, 5, v16       ; + row*32
    """)
    a("buffer_store_dwordx4 v[8:11], v16, s[12:15], 0 offen")
    a(f"v_add_u32 v16, {16*BLK_BYTES}, v16")
    a("buffer_store_dwordx4 v[12:15], v16, s[12:15], 0 offen")
    a("s_waitcnt vmcnt(0)")
    a.label("L_k0_end")
    a("s_endpgm")
    return a, 40, 20


K1_D = 6
K1_RING = 8
QKV_RB, QKV_LR, QKV_SB = 544, 34, 17408
F_RB, F_LR, F_UP, F_SB = 288, 18, 9344, 18560
K1_LDS = K1_RING * F_SB


def c0_of_tile(t):
    return (t & 3) + 8 * (t >> 2)


def gen_k1():
    a = Asm()
    a("s_cmp_ge_u32 s2, 256")
    a("s_cbranch_scc1 L_k1_end")
    a(f"s_load_dwordx2 s[4:5], s[0:1], {KA_WQKV}")
    a(f"s_load_dwordx2 s[6:7], s[0:1], {KA_W1}")
    a(f"s_load_dwordx2 s[8:9], s[0:1], {KA_W3}")
    a(f"s_load_dwordx2 s[10:11], s[0:1], {KA_WS}")
    a("""
    s_and_b32 s3, s2, 7               ; j = xcd
    s_lshr_b32 s36, s2, 3             ; i
    s_and_b32 s12, s3, 3
    s_lshl_b32 s12, s12, 2
    s_and_b32 s37, s36, 3
    s_add_u32 s12, s12, s37           ; cg = 4*(j&3) + (i&3)
    s_lshr_b32 s13, s3, 2
    s_lshl_b32 s13, s13, 3
    s_lshr_b32 s37, s36, 2
    s_add_u32 s13, s13, s37           ; rb = 8*(j>>2) + (i>>2)
    v_and_b32 v1, 63, v0              ; lane
    v_lshrrev_b32 v2, 6, v0           ; wave
    s_nop 0
    v_readfirstlane_b32 s14, v2
    v_and_b32 v3, 31, v1              ; l&31
    v_lshrrev_b32 v4, 5, v1           ; hh
    s_lshl_b32 s15, s13, 7
    s_lshl_b32 s37, s14, 5
    s_add_u32 s15, s15, s37
    v_add_u32 v5, s15, v3             ; token
    v_lshlrev_b32 v5, 5, v5
    v_lshl_add_u32 v5, v4, 4, v5
    s_waitcnt lgkmcnt(0)
    """)
    srd(a, 16, 10, S * D * 2, WS_XB)
    for kb in range(32):
        a(f"s_mov_b32 s37, {kb * BLK_BYTES}")
        a(f"buffer_load_dwordx4 a[{4*kb}:{4*kb+3}], v5, s[16:19], s37 offen")
    a("s_lshl_b32 s38, s14, 10          ; wave*1024")
    a("""
    v_lshrrev_b32 v6, 4, v1
    v_and_b32 v6, 1, v6               ; grp
    v_lshrrev_b32 v7, 2, v1
    v_and_b32 v7, 3, v7               ; r
    v_and_b32 v8, 3, v1               ; c4
    v_lshlrev_b32 v9, 1, v8
    v_and_b32 v9, 2, v9
    v_lshrrev_b32 v10, 1, v8
    v_or_b32 v9, v9, v10
    v_lshl_add_u32 v10, v4, 3, v7     ; 8*hh + r
    """)
    a("s_cmp_ge_u32 s12, 6")
    a("s_cbranch_scc1 L_k1_f")
    a("s_cmp_ge_u32 s12, 4")
    a("s_cbranch_scc1 L_k1_v")
    k1_variant(a, "qk")
    a.label("L_k1_v")
    k1_variant(a, "v")
    a.label("L_k1_f")
    k1_variant(a, "f")
    a.label("L_k1_end")
    a("s_endpgm")
    return a, 0, 0


def k1_variant(a, typ):
    isF = typ == "f"
    NT = 9 if isF else 8
    RB, LR, SB = (F_RB, F_LR, F_SB) if isF else (QKV_RB, QKV_LR, QKV_SB)
    pitch = 2752 if isF else 3072
    ACC = 40
    WR = ACC + 16 * NT
    NR = K1_D + 1
    VB0 = WR + 4 * NR
    VBA, VBB = VB0 + 1, VB0 + 2
    VD = VB0 + 3
    VT = VD + 5
    if isF:
        a("""
        s_sub_u32 s39, s12, 6             ; g
        s_mul_i32 s40, s39, 9
        s_lshl_b32 s41, s39, 3
        s_add_u32 s41, s41, 6
        s_cmp_lt_u32 s39, 6
        s_cselect_b32 s40, s40, s41
        s_cselect_b32 s41, 9, 8           ; nt
        s_lshl_b32 s42, s40, 5
        """)
        srd(a, 20, 6, D * F * 2)
        srd(a, 24, 8, D * F * 2)
        a("""
        s_cmp_eq_u32 s14, 0
        s_cselect_b32 s28, s20, s24
        s_cselect_b32 s29, s21, s25
        s_mov_b32 s30, s22
        s_mov_b32 s31, 0x00020000
        """)
        a(f"s_mov_b32 s47, {F_UP + 8*1024}")
        a(f"s_cselect_b32 s43, {8*1024}, s47")
    else:
        a("s_and_b32 s39, s12, 1")
        a(f"s_lshl_b32 s42, s39, 9")
        base = {"qk": None, "v": 2048}[typ]
        if typ == "qk":
            a("s_cmp_ge_u32 s12, 2")
            a("s_cselect_b32 s40, 1024, 0")
            a("s_add_u32 s42, s42, s40")
        else:
            a("s_add_u32 s42, s42, 2048")
        srd(a, 20, 4, D * 3 * D * 2)
    nslots = 3 if isF else 5
    for j in range(nslots):
        if j < nslots - 1:
            a(f"v_lshl_add_u32 v{VT}, s14, 6, v1")
            if j:
                a(f"v_add_u32 v{VT}, {256*j}, v{VT}")
        else:
            a(f"v_add_u32 v{VT}, {64 * (8 if isF else 16)}, v1")
        magic = 3641 if isF else 1928
        a(f"v_mul_u32_u24 v{VT+1}, {magic}, v{VT}")
        a(f"v_lshrrev_b32 v{VT+1}, 16, v{VT+1}")
        a(f"v_mul_u32_u24 v{VT+2}, {LR}, v{VT+1}")
        a(f"v_sub_u32 v{VT+2}, v{VT}, v{VT+2}                 ; c16 = q % LR")
        a(f"v_mul_u32_u24 v{VT+1}, {pitch}, v{VT+1}")
        a(f"v_lshl_add_u32 v{VT+1}, v{VT+2}, 4, v{VT+1}")
        a(f"v_add_u32 v{VD+j}, s42, v{VT+1}")
    goff = F_UP if isF else 128
    pi = "v8" if typ == "v" else "v9"
    a(f"v_mul_u32_u24 v{VB0}, {RB}, v10                   ; (8hh+r)*RB")
    a(f"v_lshl_add_u32 v{VB0}, {pi}, 3, v{VB0}             ; + pi(c4)*8")
    a(f"v_mul_u32_u24 v{VT}, {goff}, v6")
    a(f"v_add_u32 v{VB0}, v{VB0}, v{VT}")

    def dma_issue(stage):
        if stage >= 16:
            return
        slot = stage % K1_RING
        a(f"s_mov_b32 s44, {stage * 32 * pitch}")
        if isF:
            for blk, sreg, boff in ((0, 20, 0), (1, 24, F_UP)):
                for j in range(2):
                    a(f"s_add_u32 m0, s38, {slot*SB + boff + j*4096}")
                    a(f"buffer_load_dwordx4 v{VD+j}, s[{sreg}:{sreg+3}], s44 offen lds")
            lab = f"L_k1_{typ}_dskip{stage}"
            a("s_cmp_ge_u32 s14, 2")
            a.skip_begin(f"s_cbranch_scc1 {lab}")
            a(f"s_add_u32 m0, s43, {slot*SB}")
            a(f"buffer_load_dwordx4 v{VD+2}, s[28:31], s44 offen lds")
            a.skip_end(lab)
        else:
            for j in range(4):
                a(f"s_add_u32 m0, s38, {slot*SB + j*4096}")
                a(f"buffer_load_dwordx4 v{VD+j}, s[20:23], s44 offen lds")
            lab = f"L_k1_{typ}_dskip{stage}"
            a("s_cmp_ge_u32 s14, 1")
            a.skip_begin(f"s_cbranch_scc1 {lab}")
            a(f"s_mov_b32 m0, {slot*SB + 16*1024}")
            a(f"buffer_load_dwordx4 v{VD+4}, s[20:23], s44 offen lds")
            a.skip_end(lab)

    def tile_imm(t):
        return 32 * t if isF else 32 * c0_of_tile(t)

    for st in range(6):
        dma_issue(st)

    N = 32 * NT
    per_stage = 2 * NT

    def decode(n):
        st = n // per_stage
        rem = n % per_stage
        return st, rem // NT, rem % NT

    def vbase_of(st):
        return VBA if st % 2 == 0 else VBB

    def issue_read(n):
        st, ks, t = decode(n)
        if n % per_stage == 0:
            younger = 4 * (min(st + 5, 15) - st)
            a(f"s_waitcnt vmcnt({younger})")
            a("s_barrier")
            dma_issue(st + 6)
            a(f"v_add_u32 v{vbase_of(st)}, {(st % K1_RING) * SB}, v{VB0}")
        x = WR + 4 * (n % NR)
        for q in range(2):
            imm = tile_imm(t) + (16 * ks + 4 * q) * RB
            a(f"ds_read_b64_tr_b16 v[{x+2*q}:{x+2*q+1}], v{vbase_of(st)} offset:{imm}")

    for n in range(K1_D - 1):
        issue_read(n)
    for n in range(N):
        if n + K1_D - 1 < N:
            issue_read(n + K1_D - 1)
        outstanding = 2 * (min(n + K1_D - 1, N - 1) - n)
        a(f"s_waitcnt lgkmcnt({outstanding})")
        st, ks, t = decode(n)
        kg = 2 * st + ks
        x = WR + 4 * (n % NR)
        acc = f"v[{ACC+16*t}:{ACC+16*t+15}]"
        cin = acc if kg else "0"
        wf = f"v[{x}:{x+3}]"
        xf = f"a[{4*kg}:{4*kg+3}]"
        if typ == "v":
            a(f"v_mfma_f32_32x32x16_bf16 {acc}, {xf}, {wf}, {cin}")
        else:
            a(f"v_mfma_f32_32x32x16_bf16 {acc}, {wf}, {xf}, {cin}")

    if typ == "qk":
        a("s_cmp_ge_u32 s12, 2")
        a(f"s_mov_b32 s47, {WS_QB}")
        a(f"s_cselect_b32 s44, {WS_KB}, s47")
        a("s_add_u32 s32, s10, s44")
        a("s_addc_u32 s33, s11, 0")
        a(f"s_mov_b32 s34, {S*D*2}")
        a("s_mov_b32 s35, 0x00020000")
        a("s_and_b32 s39, s12, 1")
        a(f"s_lshl_b32 s45, s39, 20          ; (cg&1)*16*65536")
        for t in range(NT):
            for g in range(2):
                b = ACC + 16 * t + 8 * g
                for i in range(4):
                    a(f"v_cvt_pk_bf16_f32 v{VT+i}, v{b+2*i}, v{b+2*i+1}")
                a(f"s_add_u32 s46, s45, {(c0_of_tile(t) + 4*g) * BLK_BYTES}")
                a(f"buffer_store_dwordx4 v[{VT}:{VT+3}], v5, s[32:35], s46 offen")
                VT2 = VT
    elif typ == "v":
        srd(a, 32, 10, S * D * 2, WS_VB)
        a(f"""
        v_and_b32 v{VT+8}, 15, v1
        v_lshlrev_b32 v{VT+8}, 6, v{VT+8}
        v_lshl_add_u32 v{VT+8}, v4, 5, v{VT+8}
        v_lshl_add_u32 v{VT+8}, v6, 18, v{VT+8}
        s_and_b32 s39, s12, 1
        s_lshl_b32 s45, s39, 20
        s_lshl_b32 s46, s13, 2
        s_add_u32 s46, s46, s14
        s_lshl_b32 s46, s46, 10
        s_add_u32 s45, s45, s46
        """)
        for t in range(NT):
            b = ACC + 16 * t
            for i in range(8):
                a(f"v_cvt_pk_bf16_f32 v{VT+i}, v{b+2*i}, v{b+2*i+1}")
            a(f"s_add_u32 s46, s45, {c0_of_tile(t) * BLK_BYTES}")
            a(f"buffer_store_dwordx4 v[{VT}:{VT+3}], v{VT+8}, s[32:35], s46 offen")
            a(f"buffer_store_dwordx4 v[{VT+4}:{VT+7}], v{VT+8}, s[32:35], s46 offen offset:16")
    else:
        srd(a, 32, 10, (F // 16) * BLK_BYTES, WS_HB)
        a(f"s_lshl_b32 s45, s40, 16           ; st*65536")
        a("s_mov_b32 s47, 0xbfb8aa3b          ; -log2(e)")
        for t in range(NT):
            b = ACC + 16 * t
            for i in range(4):
                g0, g1, u0, u1 = b + 2 * i, b + 2 * i + 1, b + 8 + 2 * i, b + 9 + 2 * i
                T0, T1, T2, T3 = VT + 4, VT + 5, VT + 6, VT + 7
                a(f"""
                v_cvt_pk_bf16_f32 v{T0}, v{g0}, v{g1}
                v_cvt_pk_bf16_f32 v{T1}, v{u0}, v{u1}
                v_lshlrev_b32 v{g0}, 16, v{T0}
                v_and_b32 v{g1}, 0xffff0000, v{T0}
                v_lshlrev_b32 v{u0}, 16, v{T1}
                v_and_b32 v{u1}, 0xffff0000, v{T1}
                v_mul_f32 v{T0}, s47, v{g0}
                v_mul_f32 v{T1}, s47, v{g1}
                v_exp_f32 v{T0}, v{T0}
                v_exp_f32 v{T1}, v{T1}
                v_add_f32 v{T0}, 1.0, v{T0}
                v_add_f32 v{T1}, 1.0, v{T1}
                v_rcp_f32 v{T0}, v{T0}
                v_rcp_f32 v{T1}, v{T1}
                v_mul_f32 v{T0}, v{g0}, v{T0}
                v_mul_f32 v{T1}, v{g1}, v{T1}
                v_cvt_pk_bf16_f32 v{T2}, v{T0}, v{T1}
                v_lshlrev_b32 v{T0}, 16, v{T2}
                v_and_b32 v{T1}, 0xffff0000, v{T2}
                v_mul_f32 v{T0}, v{T0}, v{u0}
                v_mul_f32 v{T1}, v{T1}, v{u1}
                v_cvt_pk_bf16_f32 v{VT+i}, v{T0}, v{T1}
                """)
            a(f"s_add_u32 s46, s45, {t * BLK_BYTES}")
            if t == 8:
                a("s_cmp_lt_u32 s41, 9")
                a.skip_begin(f"s_cbranch_scc1 L_k1_f_nostore")
            a(f"buffer_store_dwordx4 v[{VT}:{VT+3}], v5, s[32:35], s46 offen")
            if t == 8:
                a.skip_end("L_k1_f_nostore")
    a("s_waitcnt vmcnt(0)")
    a("s_branch L_k1_end")


LOG2E = 1.4426950408889634


def f32_hex(x):
    import struct
    return "0x%08x" % struct.unpack("<I", struct.pack("<f", x))[0]


def gen_k2():
    a = Asm()
    QF, KF, VF, OA, SS = 4, 8, 44, 80, 96
    T0 = 88
    NEG = "0xff800000"
    a("s_cmp_ge_u32 s2, 512")
    a("s_cbranch_scc1 L_k2_end")
    a(f"s_load_dwordx2 s[4:5], s[0:1], {KA_WS}")
    a("""
    s_and_b32 s3, s2, 7               ; xcd
    s_lshr_b32 s9, s2, 3              ; i (0..63)
    s_and_b32 s6, s9, 3
    s_lshl_b32 s3, s3, 2
    s_add_u32 s6, s6, s3
    s_lshr_b32 s9, s9, 2              ; qgroup (0..15)
    v_and_b32 v1, 63, v0
    v_lshrrev_b32 v2, 6, v0
    s_nop 0
    v_readfirstlane_b32 s8, v2        ; wave
    s_lshl_b32 s7, s9, 2
    s_add_u32 s7, s7, s8              ; qb
    v_and_b32 v2, 31, v1              ; l&31
    v_lshrrev_b32 v3, 5, v1           ; hh
    v_lshlrev_b32 v92, 5, v2
    v_lshl_add_u32 v92, v3, 4, v92
    v_and_b32 v93, 15, v1
    v_lshlrev_b32 v93, 6, v93
    v_lshrrev_b32 v94, 4, v1
    v_lshl_add_u32 v93, v94, 4, v93
    s_waitcnt lgkmcnt(0)
    """)
    srd(a, 12, 4, S * D * 2, WS_QB)
    srd(a, 16, 4, S * D * 2, WS_KB)
    srd(a, 20, 4, S * D * 2, WS_VB)
    srd(a, 24, 4, S * D * 2, WS_OB)
    a("s_lshl_b32 s10, s6, 16           ; head*65536")
    a("s_lshl_b32 s11, s7, 10           ; qb*1024")
    a("s_add_u32 s11, s11, s10")
    a(f"buffer_load_dwordx4 v[{QF}:{QF+3}], v92, s[12:15], s11 offen")
    for t in range(9):
        a(f"s_add_i32 s{64+t}, s7, {t-8}")
        a(f"s_max_i32 s28, s{64+t}, 0")
        a("s_lshl_b32 s28, s28, 10")
        a("s_add_u32 s28, s28, s10")
        a(f"buffer_load_dwordx4 v[{KF+4*t}:{KF+4*t+3}], v92, s[16:19], s28 offen")
        a(f"s_mov_b32 s{76+t}, s28")
    for t in range(9):
        a(f"buffer_load_dwordx4 v[{VF+4*t}:{VF+4*t+3}], v93, s[20:23], s{76+t} offen")
    a("v_lshlrev_b32 v94, 2, v3")
    a("v_sub_u32 v94, v2, v94")
    for r in range(16):
        kk = 8 * (r >> 2) + (r & 3)
        a(f"v_cmp_ge_i32 s[{32+2*r}:{33+2*r}], v94, {kk}")
    for t in range(9):
        a(f"s_waitcnt vmcnt({(8 - t) + 9})")
        a(f"v_mfma_f32_32x32x16_bf16 v[{SS+16*t}:{SS+16*t+15}], v[{KF+4*t}:{KF+4*t+3}], v[{QF}:{QF+3}], 0")
    for t in range(8):
        lab = f"L_k2_ok{t}"
        a(f"s_cmp_ge_i32 s{64+t}, 0")
        a.skip_begin(f"s_cbranch_scc1 {lab}")
        for r in range(16):
            a(f"v_mov_b32 v{SS+16*t+r}, {NEG}")
        a.skip_end(lab)
    a(f"v_mov_b32 v{T0}, {NEG}")
    for r in range(16):
        a(f"v_cndmask_b32 v{SS+128+r}, v{T0}, v{SS+128+r}, s[{32+2*r}:{33+2*r}]")
    for r in range(16):
        a(f"v_cndmask_b32 v{SS+r}, v{SS+r}, v{T0}, s[{32+2*r}:{33+2*r}]")
    ch = [T0, T0 + 1, T0 + 2, T0 + 3]
    for c in range(4):
        a(f"v_max_f32 v{ch[c]}, v{SS+2*c}, v{SS+2*c+1}")
    idx = 8
    while idx < 144:
        c = (idx // 2) % 4
        a(f"v_max3_f32 v{ch[c]}, v{SS+idx}, v{SS+idx+1}, v{ch[c]}")
        idx += 2
    a(f"v_max3_f32 v{T0}, v{T0}, v{T0+1}, v{T0+2}")
    a(f"v_max_f32 v{T0}, v{T0}, v{T0+3}")
    a(f"v_mov_b32 v{T0+1}, v{T0}")
    a(f"v_permlane32_swap_b32 v{T0}, v{T0+1}")
    a(f"v_max_f32 v{T0}, v{T0}, v{T0+1}")
    round_bf16(a, T0, T0, T0 + 1)
    c = 0.25 * LOG2E
    a(f"s_mov_b32 s29, {f32_hex(c)}")
    a(f"v_mul_f32 v{T0}, s29, v{T0}")
    a(f"v_sub_f32 v{T0}, 0, v{T0}       ; -m*c")
    a(f"v_mov_b32 v{T0+1}, 0")
    a(f"v_mov_b32 v{T0+2}, 0")
    for i in range(72):
        x0, x1 = SS + 2 * i, SS + 2 * i + 1
        a(f"v_cvt_pk_bf16_f32 v{T0+3}, v{x0}, v{x1}")
        a(f"v_lshlrev_b32 v{x0}, 16, v{T0+3}")
        a(f"v_and_b32 v{x1}, 0xffff0000, v{T0+3}")
        a(f"v_fma_f32 v{x0}, v{x0}, s29, v{T0}")
        a(f"v_fma_f32 v{x1}, v{x1}, s29, v{T0}")
        a(f"v_exp_f32 v{x0}, v{x0}")
        a(f"v_exp_f32 v{x1}, v{x1}")
        a(f"v_add_f32 v{T0+1}, v{T0+1}, v{x0}")
        a(f"v_add_f32 v{T0+2}, v{T0+2}, v{x1}")
    a(f"v_add_f32 v{T0+1}, v{T0+1}, v{T0+2}")
    a(f"v_mov_b32 v{T0+2}, v{T0+1}")
    a(f"v_permlane32_swap_b32 v{T0+1}, v{T0+2}")
    a(f"v_add_f32 v{T0+1}, v{T0+1}, v{T0+2}")
    a(f"v_rcp_f32 v{T0+1}, v{T0+1}")
    for k in range(72):
        x0, x1 = SS + 2 * k, SS + 2 * k + 1
        a(f"v_mul_f32 v{x0}, v{x0}, v{T0+1}")
        a(f"v_mul_f32 v{x1}, v{x1}, v{T0+1}")
        a(f"v_cvt_pk_bf16_f32 v{SS+k}, v{x0}, v{x1}")
    a("s_waitcnt vmcnt(0)")
    for t in range(9):
        p = SS + 8 * t
        for r in range(4):
            a(f"v_permlane16_swap_b32 v{p+r}, v{p+4+r}")
        cin0 = f"v[{OA}:{OA+3}]" if t else "0"
        cin1 = f"v[{OA+4}:{OA+7}]" if t else "0"
        a(f"v_mfma_f32_16x16x32_bf16 v[{OA}:{OA+3}], v[{VF+4*t}:{VF+4*t+3}], v[{p}:{p+3}], {cin0}")
        a(f"v_mfma_f32_16x16x32_bf16 v[{OA+4}:{OA+7}], v[{VF+4*t}:{VF+4*t+3}], v[{p+4}:{p+7}], {cin1}")
    a("""
    v_and_b32 v2, 15, v1
    v_lshlrev_b32 v2, 5, v2
    v_lshrrev_b32 v3, 4, v1
    v_lshl_add_u32 v2, v3, 3, v2      ; (l&15)*32 + (l>>4)*8
    """)
    for qt in range(2):
        a(f"v_cvt_pk_bf16_f32 v{T0+4+2*qt}, v{OA+4*qt}, v{OA+4*qt+1}")
        a(f"v_cvt_pk_bf16_f32 v{T0+5+2*qt}, v{OA+4*qt+2}, v{OA+4*qt+3}")
    a("buffer_store_dwordx2 v[92:93], v2, s[24:27], s11 offen")
    a("buffer_store_dwordx2 v[94:95], v2, s[24:27], s11 offen offset:512")
    a("s_waitcnt vmcnt(0)")
    a.label("L_k2_end")
    a("s_endpgm")
    return a, 0, 0


class VmTracker:
    def __init__(self, a):
        self.a = a
        self.ops = []
        self.done = -1

    def issue(self, tag):
        self.ops.append(tag)

    def wait(self, tag):
        idx = max(i for i, t in enumerate(self.ops) if t == tag)
        if idx <= self.done:
            return
        n = len(self.ops) - 1 - idx
        assert n <= 63
        self.a(f"s_waitcnt vmcnt({n})")
        self.done = idx


K3_ROWS = 128
K3_SB = K3_ROWS * 128
K3_RING = 8
K3_LDS = K3_SB * K3_RING
K3_AD = 16
K3_D = 4


def gen_k3():
    a = Asm()
    vm = VmTracker(a)
    a("s_cmp_ge_u32 s2, 256")
    a("s_cbranch_scc1 L_k3_end")
    a(f"s_load_dwordx2 s[4:5], s[0:1], {KA_X}")
    a(f"s_load_dwordx2 s[6:7], s[0:1], {KA_WO}")
    a(f"s_load_dwordx2 s[8:9], s[0:1], {KA_W2}")
    a(f"s_load_dwordx2 s[10:11], s[0:1], {KA_OUT}")
    a(f"s_load_dwordx2 s[12:13], s[0:1], {KA_WS}")
    a("""
    s_and_b32 s3, s2, 7               ; xcd
    s_lshr_b32 s14, s2, 3             ; i
    s_and_b32 s15, s14, 3
    s_lshl_b32 s3, s3, 2
    s_add_u32 s15, s15, s3
    s_lshr_b32 s14, s14, 2            ; cb = i>>2
    v_and_b32 v1, 63, v0
    v_lshrrev_b32 v2, 6, v0
    s_nop 0
    v_readfirstlane_b32 s16, v2       ; wave
    s_lshr_b32 s17, s16, 1            ; tw
    s_and_b32 s18, s16, 1             ; cw
    v_and_b32 v2, 31, v1              ; l&31
    v_lshrrev_b32 v3, 5, v1           ; hh
    s_lshl_b32 s19, s15, 6
    s_lshl_b32 s3, s17, 5
    s_add_u32 s19, s19, s3
    v_add_u32 v4, s19, v2             ; token
    v_lshlrev_b32 v5, 5, v4
    v_lshl_add_u32 v5, v3, 4, v5
    s_waitcnt lgkmcnt(0)
    """)
    srd(a, 20, 12, 16 << 20)
    srd(a, 24, 6, D * D * 2)
    srd(a, 28, 8, F * D * 2)
    a("""
    v_lshrrev_b32 v6, 3, v1
    v_and_b32 v7, 7, v1               ; pos16
    v_lshrrev_b32 v8, 1, v7           ; pos32
    v_and_b32 v9, 1, v7               ; half
    v_lshrrev_b32 v10, 1, v6
    v_and_b32 v10, 1, v10
    v_lshlrev_b32 v10, 1, v10         ; 2*((row>>1)&1)
    v_xor_b32 v8, v8, v10
    v_lshlrev_b32 v8, 5, v8
    v_lshl_add_u32 v8, v9, 4, v8
    v_lshl_add_u32 v8, v6, 10, v8     ; + row*1024
    s_lshl_b32 s3, s14, 7
    v_add_u32 v8, s3, v8              ; + cb*128
    s_lshl_b32 s3, s16, 13
    v_add_u32 v8, s3, v8
    s_lshl_b32 s32, s16, 10
    """)
    a("""
    v_lshrrev_b32 v6, 4, v1
    v_and_b32 v6, 1, v6               ; grp
    v_lshrrev_b32 v7, 2, v1
    v_and_b32 v7, 3, v7               ; r
    v_and_b32 v9, 3, v1               ; c4
    v_lshlrev_b32 v10, 1, v9
    v_and_b32 v10, 2, v10
    v_lshrrev_b32 v11, 1, v9
    v_or_b32 v10, v10, v11            ; pi(c4)
    s_lshl_b32 s3, s18, 1
    v_add_u32 v6, s3, v6
    v_lshrrev_b32 v11, 1, v7
    v_lshlrev_b32 v11, 1, v11         ; 2*(r>>1)
    v_xor_b32 v6, v6, v11             ; pos
    v_lshl_add_u32 v7, v3, 3, v7      ; 8hh + r
    v_lshlrev_b32 v7, 7, v7           ; *128
    v_lshl_add_u32 v7, v6, 5, v7      ; + pos*32
    v_lshl_add_u32 v7, v10, 3, v7
    """)
    ACC_S, ACC_G = 16, 32
    AR = 48
    WR = AR + 4 * K3_AD
    NWR = K3_D + 1
    VBA, VBB = WR + 4 * NWR, WR + 4 * NWR + 1
    VT = (VBB + 4) & ~3
    NK = 118
    NST = 15

    def dma_issue(st):
        if st >= NST:
            return
        slot = st % K3_RING
        nrows = min(K3_ROWS, 1888 - st * K3_ROWS)
        if st < 4:
            sreg, row0 = 24, st * K3_ROWS
        else:
            sreg, row0 = 28, (st - 4) * K3_ROWS
        for j in range(4):
            if j * 32 >= nrows:
                continue
            a(f"s_mov_b32 s33, {(row0 + 32*j) * 1024}")
            a(f"s_add_u32 m0, s32, {slot*K3_SB + j*4096}")
            a(f"buffer_load_dwordx4 v8, s[{sreg}:{sreg+3}], s33 offen lds")
            vm.issue(("dma", st))

    def a_issue(n):
        if n >= NK:
            return
        off = (WS_OB + n * BLK_BYTES) if n < 32 else (WS_HB + (n - 32) * BLK_BYTES)
        x = AR + 4 * (n % K3_AD)
        a(f"s_mov_b32 s34, {off}")
        a(f"buffer_load_dwordx4 v[{x}:{x+3}], v5, s[20:23], s34 offen")
        vm.issue(("a", n))

    for n in range(K3_AD):
        a_issue(n)
    for st in range(6):
        dma_issue(st)

    def vbase_of(st):
        return VBA if st % 2 == 0 else VBB

    def issue_read(n):
        st, ks = n // 8, n % 8
        if ks == 0:
            vm.wait(("dma", st))
            a("s_barrier")
            dma_issue(st + 6)
            a(f"v_add_u32 v{vbase_of(st)}, {(st % K3_RING) * K3_SB}, v7")
        x = WR + 4 * (n % NWR)
        for q in range(2):
            a(f"ds_read_b64_tr_b16 v[{x+2*q}:{x+2*q+1}], v{vbase_of(st)} offset:{(16*ks + 4*q) * 128}")

    for n in range(K3_D - 1):
        issue_read(n)
    for n in range(NK):
        if n + K3_D - 1 < NK:
            issue_read(n + K3_D - 1)
        outstanding = 2 * (min(n + K3_D - 1, NK - 1) - n)
        vm.wait(("a", n))
        a(f"s_waitcnt lgkmcnt({outstanding})")
        x = WR + 4 * (n % NWR)
        ax = AR + 4 * (n % K3_AD)
        acc = ACC_S if n < 32 else ACC_G
        first = n in (0, 32)
        cin = "0" if first else f"v[{acc}:{acc+15}]"
        a(f"v_mfma_f32_32x32x16_bf16 v[{acc}:{acc+15}], v[{x}:{x+3}], v[{ax}:{ax+3}], {cin}")
        a_issue(n + K3_AD)
    srd(a, 36, 4, S * D * 2)
    srd(a, 40, 10, S * D * 2)
    a("""
    v_lshlrev_b32 v6, 10, v4          ; token*1024
    s_lshl_b32 s3, s14, 7
    s_lshl_b32 s33, s18, 6
    s_add_u32 s3, s3, s33
    v_add_u32 v6, s3, v6
    v_lshl_add_u32 v6, v3, 4, v6      ; + hh*16
    """)
    a(f"buffer_load_dwordx4 v[{VT}:{VT+3}], v6, s[36:39], 0 offen")
    a(f"buffer_load_dwordx4 v[{VT+4}:{VT+7}], v6, s[36:39], 0 offen offset:32")
    a("s_mov_b32 s33, 0xbfb8aa3b          ; -log2(e)")
    T = VT + 8
    OUTR = T + 8
    a("s_waitcnt vmcnt(0)")
    for g in range(2):
        for i in range(4):
            s0, s1 = ACC_S + 8 * g + 2 * i, ACC_S + 8 * g + 2 * i + 1
            g0, g1 = ACC_G + 8 * g + 2 * i, ACC_G + 8 * g + 2 * i + 1
            xr = VT + 4 * g + i
            a(f"""
            v_cvt_pk_bf16_f32 v{T}, v{s0}, v{s1}
            v_cvt_pk_bf16_f32 v{T+1}, v{g0}, v{g1}
            v_lshlrev_b32 v{s0}, 16, v{T}
            v_and_b32 v{s1}, 0xffff0000, v{T}
            v_lshlrev_b32 v{g0}, 16, v{T+1}
            v_and_b32 v{g1}, 0xffff0000, v{T+1}
            v_mul_f32 v{T}, s33, v{g0}
            v_mul_f32 v{T+1}, s33, v{g1}
            v_exp_f32 v{T}, v{T}
            v_exp_f32 v{T+1}, v{T+1}
            v_add_f32 v{T}, 1.0, v{T}
            v_add_f32 v{T+1}, 1.0, v{T+1}
            v_rcp_f32 v{T}, v{T}
            v_rcp_f32 v{T+1}, v{T+1}
            v_mul_f32 v{T}, v{g0}, v{T}
            v_mul_f32 v{T+1}, v{g1}, v{T+1}
            v_cvt_pk_bf16_f32 v{T+2}, v{T}, v{T+1}
            v_lshlrev_b32 v{T}, 16, v{T+2}
            v_and_b32 v{T+1}, 0xffff0000, v{T+2}
            v_mul_f32 v{T}, v{T}, v{s0}
            v_mul_f32 v{T+1}, v{T+1}, v{s1}
            v_cvt_pk_bf16_f32 v{T+2}, v{T}, v{T+1}
            v_lshlrev_b32 v{T}, 16, v{T+2}
            v_and_b32 v{T+1}, 0xffff0000, v{T+2}
            v_lshlrev_b32 v{T+3}, 16, v{xr}
            v_and_b32 v{T+4}, 0xffff0000, v{xr}
            v_add_f32 v{T}, v{T}, v{T+3}
            v_add_f32 v{T+1}, v{T+1}, v{T+4}
            v_cvt_pk_bf16_f32 v{OUTR+4*g+i}, v{T}, v{T+1}
            """)
    a(f"buffer_store_dwordx4 v[{OUTR}:{OUTR+3}], v6, s[40:43], 0 offen")
    a(f"buffer_store_dwordx4 v[{OUTR+4}:{OUTR+7}], v6, s[40:43], 0 offen offset:32")
    a("s_waitcnt vmcnt(0)")
    a.label("L_k3_end")
    a("s_endpgm")
    return a, 0, 0


KERNELS = [
    ("k0_ln_kernel", gen_k0, (256, 1, 1), (256, 1, 1), 0),
    ("k1_proj_kernel", gen_k1, (256, 1, 1), (256, 1, 1), K1_LDS),
    ("k2_attn_kernel", gen_k2, (512, 1, 1), (256, 1, 1), 0),
    ("k3_out_kernel", gen_k3, (256, 1, 1), (256, 1, 1), K3_LDS),
]


def kernel_text(name, genfn):
    a, nv, ns = genfn()
    nv = ((max(nv, a.max_v + 1) + 7) // 8) * 8
    acc_off = ((a.max_v + 1 + 3) // 4) * 4
    nfv = acc_off + (a.max_a + 1) if a.max_a >= 0 else max(a.max_v + 1, 1)
    body = a.text()
    txt = f""".globl {name}
.p2align 8
.type {name},@function
{name}:
{body}"""
    kd = f""".amdhsa_kernel {name}
  .amdhsa_next_free_vgpr {nfv}
  .amdhsa_next_free_sgpr {max(a.max_s + 1, 8)}
  .amdhsa_accum_offset {acc_off}
  .amdhsa_group_segment_fixed_size 0
  .amdhsa_kernarg_size 80
  .amdhsa_user_sgpr_count 2
  .amdhsa_user_sgpr_kernarg_segment_ptr 1
  .amdhsa_system_sgpr_workgroup_id_x 1
.end_amdhsa_kernel"""
    return txt, kd, a


HEADER = """; Kernarg layout for this problem (80 bytes, ptrs only, base s[0:1]):
;   offset   8: d_in[1] A_wqkv  shape=(512, 1536) dtype=bfloat16
"""


def main(out_path, kernels=None):
    kernels = kernels or KERNELS
    hdr = HEADER
    for (name, fn, grid, block, lds) in kernels:
        hdr += f"; @launch kernel={name} grid=({grid[0]},{grid[1]},{grid[2]}) block=({block[0]},{block[1]},{block[2]}) lds={lds}\n"
    txt = hdr + '.amdgcn_target "amdgcn-amd-amdhsa--gfx950"\n.text\n'
    kds = []
    for (name, fn, grid, block, lds) in kernels:
        t, kd, a = kernel_text(name, fn)
        txt += t
        kds.append(kd)
        print(f"{name}: {a.count} insts, {a.n_nops} nops, max v{a.max_v} a{a.max_a} s{a.max_s}", file=sys.stderr)
    txt += '.section .rodata,"a"\n.p2align 6\n' + "\n.p2align 6\n".join(kds) + "\n"
    open(out_path, "w").write(txt)


if __name__ == "__main__":
    main(sys.argv[1] if len(sys.argv) > 1 else f"cdna_kernels/{NAME}.s")
```

```python
import os, sys
DBG = os.environ.get('K1DBG', '')
STMOD = os.environ.get('STMOD', '')
sys.path.insert(0, "work")
from dsl import Asm

NAME = "recurrent_scan__sliding_block__glu_gated_swiglu__prompt"
S, D, F, H, DH = 2048, 512, 1376, 32, 16

KA_X, KA_WQKV, KA_WO, KA_BX, KA_W1, KA_W3, KA_W2, KA_OUT, KA_DBG, KA_WS = [8 * i for i in range(10)]

WS_XB = 0
WS_QB = 2 << 20
WS_KB = 4 << 20
WS_VB = 6 << 20
WS_HB = 8 << 20
WS_OB = 14 << 20
BLK_BYTES = S * 32


def srd(a, dst, base_lo, nbytes, off=0):
    if off:
        a(f"s_add_u32 s{dst}, s{base_lo}, {off}")
        a(f"s_addc_u32 s{dst+1}, s{base_lo+1}, 0")
    else:
        a(f"s_mov_b32 s{dst}, s{base_lo}")
        a(f"s_mov_b32 s{dst+1}, s{base_lo+1}")
    a(f"s_mov_b32 s{dst+2}, {nbytes}")
    a(f"s_mov_b32 s{dst+3}, 0x00020000")


def round_bf16(a, dst, src, tmp):
    a(f"v_cvt_pk_bf16_f32 v{tmp}, v{src}, v{src}")
    a(f"v_lshlrev_b32 v{dst}, 16, v{tmp}")


class VmTracker:
    def __init__(self, a):
        self.a = a
        self.ops = []
        self.done = -1

    def issue(self, tag):
        self.ops.append(tag)

    def wait(self, tag):
        idx = max(i for i, t in enumerate(self.ops) if t == tag)
        if idx <= self.done:
            return
        n = len(self.ops) - 1 - idx
        assert n <= 63
        self.a(f"s_waitcnt vmcnt({n})")
        self.done = idx


def gen_k0():
    a = Asm()
    a("s_cmp_ge_u32 s2, 256")
    a("s_cbranch_scc1 L_k0_end")
    a(f"s_load_dwordx2 s[4:5], s[0:1], {KA_X}")
    a(f"s_load_dwordx2 s[6:7], s[0:1], {KA_WS}")
    a("""
    v_and_b32 v1, 31, v0            ; c = lane & 31
    v_lshrrev_b32 v2, 5, v0
    v_lshl_add_u32 v2, s2, 3, v2
    v_lshlrev_b32 v3, 10, v2        ; row*1024
    v_lshl_add_u32 v3, v1, 4, v3    ; + c*16
    s_waitcnt lgkmcnt(0)
    """)
    srd(a, 8, 4, S * D * 2)
    srd(a, 12, 6, S * D * 2, WS_XB)
    a("""
    buffer_load_dwordx4 v[8:11], v3, s[8:11], 0 offen
    buffer_load_dwordx4 v[12:15], v3, s[8:11], 0 offen offset:512
    v_mov_b32 v4, 0x3f803f80
    v_mov_b32 v5, 0
    s_waitcnt vmcnt(0)
    """)
    for i in range(8):
        a(f"v_dot2_f32_bf16 v5, v{8+i}, v4, v5")

    def allreduce32(v, t):
        for sh in (8, 4, 2, 1):
            a(f"v_add_f32_dpp v{v}, v{v}, v{v} row_ror:{sh} row_mask:0xf bank_mask:0xf")
        a(f"v_mov_b32 v{t}, v{v}")
        a(f"v_permlane16_swap_b32 v{v}, v{t}")
        a(f"v_add_f32 v{v}, v{v}, v{t}")

    allreduce32(5, 6)
    a("v_mul_f32 v5, 0x3b000000, v5")
    a("v_mov_b32 v6, 0")
    for i in range(8):
        a(f"v_lshlrev_b32 v{16+2*i}, 16, v{8+i}")
        a(f"v_and_b32 v{17+2*i}, 0xffff0000, v{8+i}")
        a(f"v_sub_f32 v32, v{16+2*i}, v5")
        a(f"v_sub_f32 v33, v{17+2*i}, v5")
        a("v_fmac_f32 v6, v32, v32")
        a("v_fmac_f32 v6, v33, v33")
    allreduce32(6, 7)
    a("v_mul_f32 v6, 0x3b000000, v6   ; var")
    a("""
    v_cvt_pk_bf16_f32 v7, v5, v6
    v_lshlrev_b32 v5, 16, v7
    v_and_b32 v6, 0xffff0000, v7
    v_add_f32 v6, 0x3727c5ac, v6         ; + 1e-5
    """)
    round_bf16(a, 6, 6, 7)
    a("v_sqrt_f32 v6, v6")
    round_bf16(a, 6, 6, 7)
    a("v_rcp_f32 v7, v6")
    for i in range(8):
        a(f"v_sub_f32 v32, v{16+2*i}, v5")
        a(f"v_sub_f32 v33, v{17+2*i}, v5")
        a("v_cvt_pk_bf16_f32 v34, v32, v33")
        a("v_lshlrev_b32 v32, 16, v34")
        a("v_and_b32 v33, 0xffff0000, v34")
        a("v_mul_f32 v34, v32, v7")
        a("v_mul_f32 v35, v33, v7")
        a("v_fma_f32 v36, -v34, v6, v32")
        a("v_fma_f32 v37, -v35, v6, v33")
        a("v_fma_f32 v34, v36, v7, v34")
        a("v_fma_f32 v35, v37, v7, v35")
        a(f"v_cvt_pk_bf16_f32 v{8+i}, v34, v35")
    a("""
    v_lshrrev_b32 v16, 1, v1             ; c>>1
    v_lshlrev_b32 v16, 16, v16           ; *65536
    v_and_b32 v17, 1, v1
    v_lshl_add_u32 v16, v17, 4, v16      ; + half*16
    v_lshl_add_u32 v16, v2, 5, v16       ; + row*32
    """)
    a("buffer_store_dwordx4 v[8:11], v16, s[12:15], 0 offen")
    a(f"v_add_u32 v16, {16*BLK_BYTES}, v16")
    a("buffer_store_dwordx4 v[12:15], v16, s[12:15], 0 offen")
    a("s_waitcnt vmcnt(0)")
    a.label("L_k0_end")
    a("s_endpgm")
    return a, 40, 20


K1_D = 6
K1_RING = 8
QKV_RB, QKV_LR, QKV_SB = 544, 34, 17408
F_RB, F_LR, F_UP, F_SB = 288, 18, 9344, 18560
K1_LDS = K1_RING * F_SB


def stamp(a, idx, wsreg=10, tb=60):
    if "stamp" not in DBG:
        return
    a(f"s_memtime s[{tb}:{tb+1}]")
    a("s_waitcnt lgkmcnt(0)")
    a(f"s_mov_b32 s{tb+2+idx}, s{tb}")

def stamp_flush(a, n, wsreg=10, tb=60, region=48):
    if "stamp" not in DBG:
        return
    a(f"s_add_u32 s{tb-4}, s{wsreg}, {region<<20}")
    a(f"s_addc_u32 s{tb-3}, s{wsreg+1}, 0")
    a(f"s_mov_b32 s{tb-2}, 0x400000")
    a(f"s_mov_b32 s{tb-1}, 0x00020000")
    a("v_lshlrev_b32 v1, 6, v0")
    a("v_lshl_add_u32 v1, s2, 14, v1")
    for i in range(n):
        a(f"v_mov_b32 v2, s{tb+2+i}")
        a(f"buffer_store_dword v2, v1, s[{tb-4}:{tb-1}], 0 offen offset:{4*i}")
    a("s_waitcnt vmcnt(0)")

def c0_of_tile(t):
    return (t & 3) + 8 * (t >> 2)


def gen_k1():
    a = Asm()
    a("s_cmp_ge_u32 s2, 256")
    a("s_cbranch_scc1 L_k1_end")
    a(f"s_load_dwordx2 s[4:5], s[0:1], {KA_WQKV}")
    a(f"s_load_dwordx2 s[6:7], s[0:1], {KA_W1}")
    a(f"s_load_dwordx2 s[8:9], s[0:1], {KA_W3}")
    a(f"s_load_dwordx2 s[10:11], s[0:1], {KA_WS}")
    stamp(a, 0)
    a("""
    s_and_b32 s3, s2, 7               ; j = xcd
    s_lshr_b32 s36, s2, 3             ; i
    s_and_b32 s12, s3, 3
    s_lshl_b32 s12, s12, 2
    s_and_b32 s37, s36, 3
    s_add_u32 s12, s12, s37           ; cg = 4*(j&3) + (i&3)
    s_lshr_b32 s13, s3, 2
    s_lshl_b32 s13, s13, 3
    s_lshr_b32 s37, s36, 2
    s_add_u32 s13, s13, s37           ; rb = 8*(j>>2) + (i>>2)
    v_and_b32 v1, 63, v0              ; lane
    v_lshrrev_b32 v2, 6, v0           ; wave
    s_nop 0
    v_readfirstlane_b32 s14, v2
    v_and_b32 v3, 31, v1              ; l&31
    v_lshrrev_b32 v4, 5, v1           ; hh
    s_lshl_b32 s15, s13, 7
    s_lshl_b32 s37, s14, 5
    s_add_u32 s15, s15, s37
    v_add_u32 v5, s15, v3             ; token
    v_lshlrev_b32 v5, 5, v5
    v_lshl_add_u32 v5, v4, 4, v5
    s_waitcnt lgkmcnt(0)
    """)
    srd(a, 16, 10, S * D * 2, WS_XB)
    a("s_lshl_b32 s38, s14, 10          ; wave*1024")
    a("""
    v_lshrrev_b32 v6, 4, v1
    v_and_b32 v6, 1, v6               ; grp
    v_lshrrev_b32 v7, 2, v1
    v_and_b32 v7, 3, v7               ; r
    v_and_b32 v8, 3, v1               ; c4
    v_lshlrev_b32 v9, 1, v8
    v_and_b32 v9, 2, v9
    v_lshrrev_b32 v10, 1, v8
    v_or_b32 v9, v9, v10
    v_lshl_add_u32 v10, v4, 3, v7     ; 8*hh + r
    """)
    a("s_cmp_ge_u32 s12, 6")
    a("s_cbranch_scc1 L_k1_f")
    a("s_cmp_ge_u32 s12, 4")
    a("s_cbranch_scc1 L_k1_v")
    k1_variant(a, "qk")
    a.label("L_k1_v")
    k1_variant(a, "v")
    a.label("L_k1_f")
    k1_variant(a, "f")
    a.label("L_k1_end")
    a("s_endpgm")
    return a, 0, 0


def k1_variant(a, typ):
    isF = typ == "f"
    NT = 9 if isF else 8
    RB, LR, SB = (F_RB, F_LR, F_SB) if isF else (QKV_RB, QKV_LR, QKV_SB)
    pitch = 2752 if isF else 3072
    ACC = 40
    WR = ACC + 16 * NT
    NR = K1_D + 1
    VB0 = WR + 4 * NR
    VBA, VBB = VB0 + 1, VB0 + 2
    VD = VB0 + 3
    VT = VD + 5
    if isF:
        a("""
        s_sub_u32 s39, s12, 6             ; g
        s_mul_i32 s40, s39, 9
        s_lshl_b32 s41, s39, 3
        s_add_u32 s41, s41, 6
        s_cmp_lt_u32 s39, 6
        s_cselect_b32 s40, s40, s41
        s_cselect_b32 s41, 9, 8           ; nt
        s_lshl_b32 s42, s40, 5
        """)
        srd(a, 20, 6, D * F * 2)
        srd(a, 24, 8, D * F * 2)
        a("""
        s_cmp_eq_u32 s14, 0
        s_cselect_b32 s28, s20, s24
        s_cselect_b32 s29, s21, s25
        s_mov_b32 s30, s22
        s_mov_b32 s31, 0x00020000
        """)
        a(f"s_mov_b32 s47, {F_UP + 8*1024}")
        a(f"s_cselect_b32 s43, {8*1024}, s47")
    else:
        a("s_and_b32 s39, s12, 1")
        a(f"s_lshl_b32 s42, s39, 9")
        base = {"qk": None, "v": 2048}[typ]
        if typ == "qk":
            a("s_cmp_ge_u32 s12, 2")
            a("s_cselect_b32 s40, 1024, 0")
            a("s_add_u32 s42, s42, s40")
        else:
            a("s_add_u32 s42, s42, 2048")
        srd(a, 20, 4, D * 3 * D * 2)
    nslots = 3 if isF else 5
    for j in range(nslots):
        if j < nslots - 1:
            a(f"v_lshl_add_u32 v{VT}, s14, 6, v1")
            if j:
                a(f"v_add_u32 v{VT}, {256*j}, v{VT}")
        else:
            a(f"v_add_u32 v{VT}, {64 * (8 if isF else 16)}, v1")
        magic = 3641 if isF else 1928
        a(f"v_mul_u32_u24 v{VT+1}, {magic}, v{VT}")
        a(f"v_lshrrev_b32 v{VT+1}, 16, v{VT+1}")
        a(f"v_mul_u32_u24 v{VT+2}, {LR}, v{VT+1}")
        a(f"v_sub_u32 v{VT+2}, v{VT}, v{VT+2}                 ; c16 = q % LR")
        a(f"v_mul_u32_u24 v{VT+1}, {pitch}, v{VT+1}")
        a(f"v_lshl_add_u32 v{VT+1}, v{VT+2}, 4, v{VT+1}")
        a(f"v_add_u32 v{VD+j}, s42, v{VT+1}")
    goff = F_UP if isF else 128
    pi = "v8" if typ == "v" else "v9"
    a(f"v_mul_u32_u24 v{VB0}, {RB}, v10                   ; (8hh+r)*RB")
    a(f"v_lshl_add_u32 v{VB0}, {pi}, 3, v{VB0}             ; + pi(c4)*8")
    a(f"v_mul_u32_u24 v{VT}, {goff}, v6")
    a(f"v_add_u32 v{VB0}, v{VB0}, v{VT}")

    vm = VmTracker(a)

    def a_issue(kg):
        if kg >= 32:
            return
        a(f"s_mov_b32 s37, {kg * BLK_BYTES}")
        a(f"buffer_load_dwordx4 a[{4*kg}:{4*kg+3}], v5, s[16:19], s37 offen")
        vm.issue(("a", kg))

    def dma_issue(stage):
        if stage >= 16 or "nodma" in DBG:
            return
        slot = stage % K1_RING
        a(f"s_mov_b32 s44, {stage * 32 * pitch}")
        lab = f"L_k1_{typ}_dskip{stage}"
        a(f"s_cmp_ge_u32 s14, {2 if isF else 1}")
        a.skip_begin(f"s_cbranch_scc1 {lab}")
        if isF:
            a(f"s_add_u32 m0, s43, {slot*SB}")
            a(f"buffer_load_dwordx4 v{VD+2}, s[28:31], s44 offen lds")
        else:
            a(f"s_mov_b32 m0, {slot*SB + 16*1024}")
            a(f"buffer_load_dwordx4 v{VD+4}, s[20:23], s44 offen lds")
        a.skip_end(lab)
        if isF:
            for blk, sreg, boff in ((0, 20, 0), (1, 24, F_UP)):
                for j in range(2):
                    a(f"s_add_u32 m0, s38, {slot*SB + boff + j*4096}")
                    a(f"buffer_load_dwordx4 v{VD+j}, s[{sreg}:{sreg+3}], s44 offen lds")
                    vm.issue(("dma", stage))
        else:
            for j in range(4):
                a(f"s_add_u32 m0, s38, {slot*SB + j*4096}")
                a(f"buffer_load_dwordx4 v{VD+j}, s[20:23], s44 offen lds")
                vm.issue(("dma", stage))

    def tile_imm(t):
        return 32 * t if isF else 32 * c0_of_tile(t)

    PRE = 2
    RAMP = {0: [2, 3], 1: [4, 5], 2: [6, 7]}

    def stage_issue(st):
        a_issue(2 * st)
        a_issue(2 * st + 1)
        dma_issue(st)

    for st in range(PRE):
        stage_issue(st)

    N = 32 * NT
    per_stage = 2 * NT

    def decode(n):
        st = n // per_stage
        rem = n % per_stage
        return st, rem // NT, rem % NT

    def vbase_of(st):
        return VBA if st % 2 == 0 else VBB

    def issue_read(n):
        st, ks, t = decode(n)
        if n % per_stage == 0:
            if "nodma" not in DBG:
                vm.wait(("dma", st))
            a("s_barrier")
            for s2 in RAMP.get(st, [st + 5]):
                if s2 < 16:
                    stage_issue(s2)
            a(f"v_add_u32 v{vbase_of(st)}, {(st % K1_RING) * SB}, v{VB0}")
        x = WR + 4 * (n % NR)
        for q in range(2):
            imm = tile_imm(t) + (16 * ks + 4 * q) * RB
            if "nolds" not in DBG:
                a(f"ds_read_b64_tr_b16 v[{x+2*q}:{x+2*q+1}], v{vbase_of(st)} offset:{imm}")

    for n in range(K1_D - 1):
        issue_read(n)
    if "lat1" not in DBG:
        stamp(a, 1)
    for n in range(N):
        if n == N // 2 and "lat1" not in DBG:
            stamp(a, 2)
        if n + K1_D - 1 < N:
            issue_read(n + K1_D - 1)
        outstanding = 2 * (min(n + K1_D - 1, N - 1) - n)
        st, ks, t = decode(n)
        kg = 2 * st + ks
        vm.wait(("a", kg))
        a(f"s_waitcnt lgkmcnt({outstanding})")
        x = WR + 4 * (n % NR)
        acc = f"v[{ACC+16*t}:{ACC+16*t+15}]"
        cin = acc if kg else "0"
        wf = f"v[{x}:{x+3}]"
        xf = f"a[{4*kg}:{4*kg+3}]"
        if "nomfma" in DBG:
            pass
        elif typ == "v":
            a(f"v_mfma_f32_32x32x16_bf16 {acc}, {xf}, {wf}, {cin}")
        else:
            a(f"v_mfma_f32_32x32x16_bf16 {acc}, {wf}, {xf}, {cin}")

    stamp(a, 3)
    if "noepi" in DBG:
        pass
    elif typ == "qk":
        a("s_cmp_ge_u32 s12, 2")
        a(f"s_mov_b32 s47, {WS_QB}")
        a(f"s_cselect_b32 s44, {WS_KB}, s47")
        a("s_add_u32 s32, s10, s44")
        a("s_addc_u32 s33, s11, 0")
        a(f"s_mov_b32 s34, {S*D*2}")
        a("s_mov_b32 s35, 0x00020000")
        a("s_and_b32 s39, s12, 1")
        a(f"s_lshl_b32 s45, s39, 20          ; (cg&1)*16*65536")
        for t in range(NT):
            for g in range(2):
                b = ACC + 16 * t + 8 * g
                for i in range(4):
                    a(f"v_cvt_pk_bf16_f32 v{VT+i}, v{b+2*i}, v{b+2*i+1}")
                a(f"s_add_u32 s46, s45, {(c0_of_tile(t) + 4*g) * BLK_BYTES}")
                a(f"buffer_store_dwordx4 v[{VT}:{VT+3}], v5, s[32:35], s46 offen")
                VT2 = VT
    elif typ == "v":
        srd(a, 32, 10, S * D * 2, WS_VB)
        a(f"""
        v_and_b32 v{VT+8}, 15, v1
        v_lshlrev_b32 v{VT+8}, 6, v{VT+8}
        v_lshl_add_u32 v{VT+8}, v4, 5, v{VT+8}
        v_lshl_add_u32 v{VT+8}, v6, 18, v{VT+8}
        s_and_b32 s39, s12, 1
        s_lshl_b32 s45, s39, 20
        s_lshl_b32 s46, s13, 2
        s_add_u32 s46, s46, s14
        s_lshl_b32 s46, s46, 10
        s_add_u32 s45, s45, s46
        """)
        for t in range(NT):
            b = ACC + 16 * t
            for i in range(8):
                a(f"v_cvt_pk_bf16_f32 v{VT+i}, v{b+2*i}, v{b+2*i+1}")
            a(f"s_add_u32 s46, s45, {c0_of_tile(t) * BLK_BYTES}")
            a(f"buffer_store_dwordx4 v[{VT}:{VT+3}], v{VT+8}, s[32:35], s46 offen")
            a(f"buffer_store_dwordx4 v[{VT+4}:{VT+7}], v{VT+8}, s[32:35], s46 offen offset:16")
    else:
        srd(a, 32, 10, (F // 16) * BLK_BYTES, WS_HB)
        a(f"s_lshl_b32 s45, s40, 16           ; st*65536")
        a("s_mov_b32 s47, 0xbfb8aa3b          ; -log2(e)")
        for t in range(NT):
            b = ACC + 16 * t
            for i in range(4):
                g0, g1, u0, u1 = b + 2 * i, b + 2 * i + 1, b + 8 + 2 * i, b + 9 + 2 * i
                T0, T1, T2, T3 = VT + 4, VT + 5, VT + 6, VT + 7
                a(f"""
                v_cvt_pk_bf16_f32 v{T0}, v{g0}, v{g1}
                v_cvt_pk_bf16_f32 v{T1}, v{u0}, v{u1}
                v_lshlrev_b32 v{g0}, 16, v{T0}
                v_and_b32 v{g1}, 0xffff0000, v{T0}
                v_lshlrev_b32 v{u0}, 16, v{T1}
                v_and_b32 v{u1}, 0xffff0000, v{T1}
                v_mul_f32 v{T0}, s47, v{g0}
                v_mul_f32 v{T1}, s47, v{g1}
                v_exp_f32 v{T0}, v{T0}
                v_exp_f32 v{T1}, v{T1}
                v_add_f32 v{T0}, 1.0, v{T0}
                v_add_f32 v{T1}, 1.0, v{T1}
                v_rcp_f32 v{T0}, v{T0}
                v_rcp_f32 v{T1}, v{T1}
                v_mul_f32 v{T0}, v{g0}, v{T0}
                v_mul_f32 v{T1}, v{g1}, v{T1}
                v_cvt_pk_bf16_f32 v{T2}, v{T0}, v{T1}
                v_lshlrev_b32 v{T0}, 16, v{T2}
                v_and_b32 v{T1}, 0xffff0000, v{T2}
                v_mul_f32 v{T0}, v{T0}, v{u0}
                v_mul_f32 v{T1}, v{T1}, v{u1}
                v_cvt_pk_bf16_f32 v{VT+i}, v{T0}, v{T1}
                """)
            a(f"s_add_u32 s46, s45, {t * BLK_BYTES}")
            if t == 8:
                a("s_cmp_lt_u32 s41, 9")
                a.skip_begin(f"s_cbranch_scc1 L_k1_f_nostore")
            a(f"buffer_store_dwordx4 v[{VT}:{VT+3}], v5, s[32:35], s46 offen")
            if t == 8:
                a.skip_end("L_k1_f_nostore")
    stamp(a, 4)
    stamp_flush(a, 5)
    a("s_branch L_k1_end")


LOG2E = 1.4426950408889634


def f32_hex(x):
    import struct
    return "0x%08x" % struct.unpack("<I", struct.pack("<f", x))[0]


def gen_k2():
    a = Asm()
    QF, KF, VF, OA, SS = 4, 8, 44, 80, 96
    T0 = 88
    NEG = "0xff800000"
    a("s_cmp_ge_u32 s2, 512")
    a("s_cbranch_scc1 L_k2_end")
    a(f"s_load_dwordx2 s[4:5], s[0:1], {KA_WS}")
    a("""
    s_and_b32 s3, s2, 7               ; xcd
    s_lshr_b32 s9, s2, 3              ; i (0..63)
    s_and_b32 s6, s9, 3
    s_lshl_b32 s3, s3, 2
    s_add_u32 s6, s6, s3
    s_lshr_b32 s9, s9, 2              ; qgroup (0..15)
    v_and_b32 v1, 63, v0
    v_lshrrev_b32 v2, 6, v0
    s_nop 0
    v_readfirstlane_b32 s8, v2        ; wave
    s_lshl_b32 s7, s9, 2
    s_add_u32 s7, s7, s8              ; qb
    v_and_b32 v2, 31, v1              ; l&31
    v_lshrrev_b32 v3, 5, v1           ; hh
    v_lshlrev_b32 v92, 5, v2
    v_lshl_add_u32 v92, v3, 4, v92
    v_and_b32 v93, 15, v1
    v_lshlrev_b32 v93, 6, v93
    v_lshrrev_b32 v94, 4, v1
    v_lshl_add_u32 v93, v94, 4, v93
    s_waitcnt lgkmcnt(0)
    """)
    srd(a, 12, 4, S * D * 2, WS_QB)
    srd(a, 16, 4, S * D * 2, WS_KB)
    srd(a, 20, 4, S * D * 2, WS_VB)
    srd(a, 24, 4, S * D * 2, WS_OB)
    a("s_lshl_b32 s10, s6, 16           ; head*65536")
    a("s_lshl_b32 s11, s7, 10           ; qb*1024")
    a("s_add_u32 s11, s11, s10")
    stamp(a, 0, tb=92)
    a(f"buffer_load_dwordx4 v[{QF}:{QF+3}], v92, s[12:15], s11 offen")
    for t in range(9):
        a(f"s_add_i32 s{64+t}, s7, {t-8}")
        a(f"s_max_i32 s28, s{64+t}, 0")
        a("s_lshl_b32 s28, s28, 10")
        a("s_add_u32 s28, s28, s10")
        a(f"buffer_load_dwordx4 v[{KF+4*t}:{KF+4*t+3}], v92, s[16:19], s28 offen")
        a(f"s_mov_b32 s{76+t}, s28")
    for t in range(9):
        a(f"buffer_load_dwordx4 v[{VF+4*t}:{VF+4*t+3}], v93, s[20:23], s{76+t} offen")
    a("v_lshlrev_b32 v94, 2, v3")
    a("v_sub_u32 v94, v2, v94")
    for r in range(16):
        kk = 8 * (r >> 2) + (r & 3)
        a(f"v_cmp_ge_i32 s[{32+2*r}:{33+2*r}], v94, {kk}")
    for t in range(9):
        a(f"s_waitcnt vmcnt({(8 - t) + 9})")
        a(f"v_mfma_f32_32x32x16_bf16 v[{SS+16*t}:{SS+16*t+15}], v[{KF+4*t}:{KF+4*t+3}], v[{QF}:{QF+3}], 0")
    stamp(a, 1, tb=92)
    for t in range(8):
        lab = f"L_k2_ok{t}"
        a(f"s_cmp_ge_i32 s{64+t}, 0")
        a.skip_begin(f"s_cbranch_scc1 {lab}")
        for r in range(16):
            a(f"v_mov_b32 v{SS+16*t+r}, {NEG}")
        a.skip_end(lab)
    a(f"v_mov_b32 v{T0}, {NEG}")
    for r in range(16):
        a(f"v_cndmask_b32 v{SS+128+r}, v{T0}, v{SS+128+r}, s[{32+2*r}:{33+2*r}]")
    for r in range(16):
        a(f"v_cndmask_b32 v{SS+r}, v{SS+r}, v{T0}, s[{32+2*r}:{33+2*r}]")
    ch = [T0, T0 + 1, T0 + 2, T0 + 3]
    for c in range(4):
        a(f"v_max_f32 v{ch[c]}, v{SS+2*c}, v{SS+2*c+1}")
    idx = 8
    while idx < 144:
        c = (idx // 2) % 4
        a(f"v_max3_f32 v{ch[c]}, v{SS+idx}, v{SS+idx+1}, v{ch[c]}")
        idx += 2
    a(f"v_max3_f32 v{T0}, v{T0}, v{T0+1}, v{T0+2}")
    a(f"v_max_f32 v{T0}, v{T0}, v{T0+3}")
    a(f"v_mov_b32 v{T0+1}, v{T0}")
    a(f"v_permlane32_swap_b32 v{T0}, v{T0+1}")
    a(f"v_max_f32 v{T0}, v{T0}, v{T0+1}")
    round_bf16(a, T0, T0, T0 + 1)
    c = 0.25 * LOG2E
    a(f"s_mov_b32 s29, {f32_hex(c)}")
    a(f"v_mul_f32 v{T0}, s29, v{T0}")
    a(f"v_sub_f32 v{T0}, 0, v{T0}       ; -m*c")
    a(f"v_mov_b32 v{T0+1}, 0")
    a(f"v_mov_b32 v{T0+2}, 0")
    for i in range(72):
        x0, x1 = SS + 2 * i, SS + 2 * i + 1
        a(f"v_cvt_pk_bf16_f32 v{T0+3}, v{x0}, v{x1}")
        a(f"v_lshlrev_b32 v{x0}, 16, v{T0+3}")
        a(f"v_and_b32 v{x1}, 0xffff0000, v{T0+3}")
        a(f"v_fma_f32 v{x0}, v{x0}, s29, v{T0}")
        a(f"v_fma_f32 v{x1}, v{x1}, s29, v{T0}")
        a(f"v_exp_f32 v{x0}, v{x0}")
        a(f"v_exp_f32 v{x1}, v{x1}")
        a(f"v_add_f32 v{T0+1}, v{T0+1}, v{x0}")
        a(f"v_add_f32 v{T0+2}, v{T0+2}, v{x1}")
    a(f"v_add_f32 v{T0+1}, v{T0+1}, v{T0+2}")
    a(f"v_mov_b32 v{T0+2}, v{T0+1}")
    a(f"v_permlane32_swap_b32 v{T0+1}, v{T0+2}")
    a(f"v_add_f32 v{T0+1}, v{T0+1}, v{T0+2}")
    a(f"v_rcp_f32 v{T0+1}, v{T0+1}")
    for k in range(72):
        x0, x1 = SS + 2 * k, SS + 2 * k + 1
        a(f"v_mul_f32 v{x0}, v{x0}, v{T0+1}")
        a(f"v_mul_f32 v{x1}, v{x1}, v{T0+1}")
        a(f"v_cvt_pk_bf16_f32 v{SS+k}, v{x0}, v{x1}")
    stamp(a, 2, tb=92)
    a("s_waitcnt vmcnt(0)")
    for t in range(9):
        p = SS + 8 * t
        for r in range(4):
            a(f"v_permlane16_swap_b32 v{p+r}, v{p+4+r}")
        cin0 = f"v[{OA}:{OA+3}]" if t else "0"
        cin1 = f"v[{OA+4}:{OA+7}]" if t else "0"
        a(f"v_mfma_f32_16x16x32_bf16 v[{OA}:{OA+3}], v[{VF+4*t}:{VF+4*t+3}], v[{p}:{p+3}], {cin0}")
        a(f"v_mfma_f32_16x16x32_bf16 v[{OA+4}:{OA+7}], v[{VF+4*t}:{VF+4*t+3}], v[{p+4}:{p+7}], {cin1}")
    a("""
    v_and_b32 v2, 15, v1
    v_lshlrev_b32 v2, 5, v2
    v_lshrrev_b32 v3, 4, v1
    v_lshl_add_u32 v2, v3, 3, v2      ; (l&15)*32 + (l>>4)*8
    """)
    for qt in range(2):
        a(f"v_cvt_pk_bf16_f32 v{T0+4+2*qt}, v{OA+4*qt}, v{OA+4*qt+1}")
        a(f"v_cvt_pk_bf16_f32 v{T0+5+2*qt}, v{OA+4*qt+2}, v{OA+4*qt+3}")
    a("buffer_store_dwordx2 v[92:93], v2, s[24:27], s11 offen")
    a("buffer_store_dwordx2 v[94:95], v2, s[24:27], s11 offen offset:512")
    stamp(a, 3, tb=92)
    a("s_waitcnt vmcnt(0)")
    stamp(a, 4, tb=92)
    stamp_flush(a, 5, wsreg=4, tb=92, region=52)
    a.label("L_k2_end")
    a("s_endpgm")
    return a, 0, 0


K3_ROWS = 128
K3_SB = K3_ROWS * 128
K3_RING = 5
K3_STG = 2 * K3_SB
K3_LDS = K3_STG * K3_RING
K3_AD = 16
K3_D = 4


def gen_k3():
    a = Asm()
    vm = VmTracker(a)
    a("s_cmp_ge_u32 s2, 256")
    a("s_cbranch_scc1 L_k3_end")
    a(f"s_load_dwordx2 s[4:5], s[0:1], {KA_X}")
    a(f"s_load_dwordx2 s[6:7], s[0:1], {KA_WO}")
    a(f"s_load_dwordx2 s[8:9], s[0:1], {KA_W2}")
    a(f"s_load_dwordx2 s[10:11], s[0:1], {KA_OUT}")
    a(f"s_load_dwordx2 s[12:13], s[0:1], {KA_WS}")
    a("""
    s_and_b32 s3, s2, 7               ; xcd
    s_lshr_b32 s14, s2, 3             ; i
    s_and_b32 s15, s14, 3
    s_lshl_b32 s3, s3, 2
    s_add_u32 s15, s15, s3
    s_lshr_b32 s14, s14, 2            ; cb = i>>2
    v_and_b32 v1, 63, v0
    v_lshrrev_b32 v2, 6, v0
    s_nop 0
    v_readfirstlane_b32 s16, v2       ; wave
    s_lshr_b32 s17, s16, 1            ; tw
    s_and_b32 s18, s16, 1             ; cw
    v_and_b32 v2, 31, v1              ; l&31
    v_lshrrev_b32 v3, 5, v1           ; hh
    s_lshl_b32 s19, s15, 6
    s_lshl_b32 s3, s17, 5
    s_add_u32 s19, s19, s3
    v_add_u32 v4, s19, v2             ; token
    v_lshlrev_b32 v5, 5, v4
    v_lshl_add_u32 v5, v3, 4, v5
    s_waitcnt lgkmcnt(0)
    """)
    srd(a, 20, 12, 16 << 20)
    srd(a, 24, 6, D * D * 2)
    srd(a, 28, 8, F * D * 2)
    a("""
    v_lshrrev_b32 v6, 3, v1
    v_and_b32 v7, 7, v1               ; pos16
    v_lshrrev_b32 v8, 1, v7           ; pos32
    v_and_b32 v9, 1, v7               ; half
    v_lshrrev_b32 v10, 1, v6
    v_and_b32 v10, 1, v10
    v_lshlrev_b32 v10, 1, v10         ; 2*((row>>1)&1)
    v_xor_b32 v8, v8, v10
    v_lshlrev_b32 v8, 5, v8
    v_lshl_add_u32 v8, v9, 4, v8
    v_lshl_add_u32 v8, v6, 10, v8     ; + row*1024
    s_lshl_b32 s3, s14, 7
    v_add_u32 v8, s3, v8              ; + cb*128
    s_lshl_b32 s3, s16, 13
    v_add_u32 v8, s3, v8
    s_lshl_b32 s32, s16, 10
    """)
    a("""
    v_lshrrev_b32 v6, 4, v1
    v_and_b32 v6, 1, v6               ; grp
    v_lshrrev_b32 v7, 2, v1
    v_and_b32 v7, 3, v7               ; r
    v_and_b32 v9, 3, v1               ; c4
    v_lshlrev_b32 v10, 1, v9
    v_and_b32 v10, 2, v10
    v_lshrrev_b32 v11, 1, v9
    v_or_b32 v10, v10, v11            ; pi(c4)
    s_lshl_b32 s3, s18, 1
    v_add_u32 v6, s3, v6
    v_lshrrev_b32 v11, 1, v7
    v_lshlrev_b32 v11, 1, v11         ; 2*(r>>1)
    v_xor_b32 v6, v6, v11             ; pos
    v_lshl_add_u32 v7, v3, 3, v7      ; 8hh + r
    v_lshlrev_b32 v7, 7, v7           ; *128
    v_lshl_add_u32 v7, v6, 5, v7      ; + pos*32
    v_lshl_add_u32 v7, v10, 3, v7
    """)
    a("""
    s_lshl_b32 s44, s15, 11           ; tb*2048
    s_lshr_b32 s3, s16, 1
    s_lshl_b32 s3, s3, 16
    s_add_u32 s44, s44, s3            ; + (w>>1)*65536
    s_and_b32 s3, s16, 1
    s_lshl_b32 s3, s3, 10
    s_add_u32 s44, s44, s3            ; + (w&1)*1024   => s44 = sAw
    v_lshlrev_b32 v9, 4, v1
    s_lshl_b32 s3, s17, 5
    v_add_u32 v10, s3, v2             ; tw*32 + (l&31)
    v_lshlrev_b32 v10, 5, v10
    v_lshl_add_u32 v10, v3, 4, v10
    """)
    a(f"v_add_u32 v10, {K3_SB}, v10")
    ACC_S, ACC_G = 16, 32
    AR = 48
    WR = AR + 4 * K3_AD
    NWR = K3_D + 1
    VBA, VBB = WR + 4 * NWR, WR + 4 * NWR + 1
    VT = (VBB + 4) & ~3
    NK = 118
    NST = 15

    def dma_issue(st):
        if st >= NST:
            return
        slot = st % K3_RING
        nrows = min(K3_ROWS, 1888 - st * K3_ROWS)
        if st < 4:
            sreg, row0 = 24, st * K3_ROWS
        else:
            sreg, row0 = 28, (st - 4) * K3_ROWS
        for j in range(4):
            if j * 32 >= nrows:
                continue
            a(f"s_mov_b32 s33, {(row0 + 32*j) * 1024}")
            a(f"s_add_u32 m0, s32, {slot*K3_STG + j*4096}")
            a(f"buffer_load_dwordx4 v8, s[{sreg}:{sreg+3}], s33 offen lds")
            vm.issue(("dma", st))
        for j in range(4):
            if 2 * j + 1 >= nrows // 16:
                continue
            n0 = 8 * st + 2 * j
            off = (WS_OB + n0 * BLK_BYTES) if n0 < 32 else (WS_HB + (n0 - 32) * BLK_BYTES)
            a(f"s_add_u32 s33, s44, {off}")
            a(f"s_add_u32 m0, s32, {slot*K3_STG + K3_SB + j*4096}")
            a("buffer_load_dwordx4 v9, s[20:23], s33 offen lds")
            vm.issue(("dma", st))

    for st in range(3):
        dma_issue(st)

    def vbase_of(st):
        return VBA if st % 2 == 0 else VBB

    def issue_read(n):
        st, ks = n // 8, n % 8
        if ks == 0:
            vm.wait(("dma", st))
            a("s_barrier")
            dma_issue(st + 3)
            a(f"v_add_u32 v{vbase_of(st)}, {(st % K3_RING) * K3_STG}, v7")
            a(f"v_add_u32 v{11 + (st % 2)}, {(st % K3_RING) * K3_STG}, v10")
        x = WR + 4 * (n % NWR)
        for q in range(2):
            a(f"ds_read_b64_tr_b16 v[{x+2*q}:{x+2*q+1}], v{vbase_of(st)} offset:{(16*ks + 4*q) * 128}")
        ax = AR + 4 * (n % NWR)
        a(f"ds_read_b128 v[{ax}:{ax+3}], v{11 + (st % 2)} offset:{ks * 2048}")

    for n in range(K3_D - 1):
        issue_read(n)
    stamp(a, 1)
    for n in range(NK):
        if n + K3_D - 1 < NK:
            issue_read(n + K3_D - 1)
        outstanding = 3 * (min(n + K3_D - 1, NK - 1) - n)
        a(f"s_waitcnt lgkmcnt({outstanding})")
        x = WR + 4 * (n % NWR)
        ax = AR + 4 * (n % NWR)
        acc = ACC_S if n < 32 else ACC_G
        first = n in (0, 32)
        cin = "0" if first else f"v[{acc}:{acc+15}]"
        a(f"v_mfma_f32_32x32x16_bf16 v[{acc}:{acc+15}], v[{x}:{x+3}], v[{ax}:{ax+3}], {cin}")
    stamp(a, 2)
    srd(a, 36, 4, S * D * 2)
    srd(a, 40, 10, S * D * 2)
    a("""
    v_lshlrev_b32 v6, 10, v4          ; token*1024
    s_lshl_b32 s3, s14, 7
    s_lshl_b32 s33, s18, 6
    s_add_u32 s3, s3, s33
    v_add_u32 v6, s3, v6
    v_lshl_add_u32 v6, v3, 4, v6      ; + hh*16
    """)
    a(f"buffer_load_dwordx4 v[{VT}:{VT+3}], v6, s[36:39], 0 offen")
    a(f"buffer_load_dwordx4 v[{VT+4}:{VT+7}], v6, s[36:39], 0 offen offset:32")
    a("s_mov_b32 s33, 0xbfb8aa3b          ; -log2(e)")
    T = VT + 8
    OUTR = T + 8
    a("s_waitcnt vmcnt(0)")
    for g in range(2):
        for i in range(4):
            s0, s1 = ACC_S + 8 * g + 2 * i, ACC_S + 8 * g + 2 * i + 1
            g0, g1 = ACC_G + 8 * g + 2 * i, ACC_G + 8 * g + 2 * i + 1
            xr = VT + 4 * g + i
            a(f"""
            v_cvt_pk_bf16_f32 v{T}, v{s0}, v{s1}
            v_cvt_pk_bf16_f32 v{T+1}, v{g0}, v{g1}
            v_lshlrev_b32 v{s0}, 16, v{T}
            v_and_b32 v{s1}, 0xffff0000, v{T}
            v_lshlrev_b32 v{g0}, 16, v{T+1}
            v_and_b32 v{g1}, 0xffff0000, v{T+1}
            v_mul_f32 v{T}, s33, v{g0}
            v_mul_f32 v{T+1}, s33, v{g1}
            v_exp_f32 v{T}, v{T}
            v_exp_f32 v{T+1}, v{T+1}
            v_add_f32 v{T}, 1.0, v{T}
            v_add_f32 v{T+1}, 1.0, v{T+1}
            v_rcp_f32 v{T}, v{T}
            v_rcp_f32 v{T+1}, v{T+1}
            v_mul_f32 v{T}, v{g0}, v{T}
            v_mul_f32 v{T+1}, v{g1}, v{T+1}
            v_cvt_pk_bf16_f32 v{T+2}, v{T}, v{T+1}
            v_lshlrev_b32 v{T}, 16, v{T+2}
            v_and_b32 v{T+1}, 0xffff0000, v{T+2}
            v_mul_f32 v{T}, v{T}, v{s0}
            v_mul_f32 v{T+1}, v{T+1}, v{s1}
            v_cvt_pk_bf16_f32 v{T+2}, v{T}, v{T+1}
            v_lshlrev_b32 v{T}, 16, v{T+2}
            v_and_b32 v{T+1}, 0xffff0000, v{T+2}
            v_lshlrev_b32 v{T+3}, 16, v{xr}
            v_and_b32 v{T+4}, 0xffff0000, v{xr}
            v_add_f32 v{T}, v{T}, v{T+3}
            v_add_f32 v{T+1}, v{T+1}, v{T+4}
            v_cvt_pk_bf16_f32 v{OUTR+4*g+i}, v{T}, v{T+1}
            """)
    a(f"buffer_store_dwordx4 v[{OUTR}:{OUTR+3}], v6, s[40:43], 0 offen")
    a(f"buffer_store_dwordx4 v[{OUTR+4}:{OUTR+7}], v6, s[40:43], 0 offen offset:32")
    stamp(a, 3)
    a("s_waitcnt vmcnt(0)")
    stamp(a, 4)
    stamp_flush(a, 5, wsreg=12, tb=60, region=56)
    a.label("L_k3_end")
    a("s_endpgm")
    return a, 0, 0


KERNELS = [
    ("k0_ln_kernel", gen_k0, (256, 1, 1), (256, 1, 1), 0),
    ("k1_proj_kernel", gen_k1, (256, 1, 1), (256, 1, 1), K1_LDS),
    ("k2_attn_kernel", gen_k2, (512, 1, 1), (256, 1, 1), 0),
    ("k3_out_kernel", gen_k3, (256, 1, 1), (256, 1, 1), K3_LDS),
]


def kernel_text(name, genfn):
    a, nv, ns = genfn()
    nv = ((max(nv, a.max_v + 1) + 7) // 8) * 8
    acc_off = ((a.max_v + 1 + 3) // 4) * 4
    nfv = acc_off + (a.max_a + 1) if a.max_a >= 0 else max(a.max_v + 1, 1)
    body = a.text()
    if STMOD:
        import re as _re
        body = _re.sub(r"(buffer_store_dword[x24]* [^\n;]*offen(?: offset:\d+)?)", lambda m: m.group(1) + " " + STMOD, body)
    txt = f""".globl {name}
.p2align 8
.type {name},@function
{name}:
{body}"""
    kd = f""".amdhsa_kernel {name}
  .amdhsa_next_free_vgpr {nfv}
  .amdhsa_next_free_sgpr {max(a.max_s + 1, 8)}
  .amdhsa_accum_offset {acc_off}
  .amdhsa_group_segment_fixed_size 0
  .amdhsa_kernarg_size 80
  .amdhsa_user_sgpr_count 2
  .amdhsa_user_sgpr_kernarg_segment_ptr 1
  .amdhsa_system_sgpr_workgroup_id_x 1
.end_amdhsa_kernel"""
    return txt, kd, a


HEADER = """; Kernarg layout for this problem (80 bytes, ptrs only, base s[0:1]):
;   offset   8: d_in[1] A_wqkv  shape=(512, 1536) dtype=bfloat16
"""


def main(out_path, kernels=None):
    kernels = kernels or KERNELS
    hdr = HEADER
    for (name, fn, grid, block, lds) in kernels:
        hdr += f"; @launch kernel={name} grid=({grid[0]},{grid[1]},{grid[2]}) block=({block[0]},{block[1]},{block[2]}) lds={lds}\n"
    txt = hdr + '.amdgcn_target "amdgcn-amd-amdhsa--gfx950"\n.text\n'
    kds = []
    for (name, fn, grid, block, lds) in kernels:
        t, kd, a = kernel_text(name, fn)
        txt += t
        kds.append(kd)
        print(f"{name}: {a.count} insts, {a.n_nops} nops, max v{a.max_v} a{a.max_a} s{a.max_s}", file=sys.stderr)
    txt += '.section .rodata,"a"\n.p2align 6\n' + "\n.p2align 6\n".join(kds) + "\n"
    open(out_path, "w").write(txt)


if __name__ == "__main__":
    main(sys.argv[1] if len(sys.argv) > 1 else f"cdna_kernels/{NAME}.s")
```
